```python
import torch

def _softmax(x, axis=-1):
    return torch.softmax(x, dim=axis)
def _gelu(x):
    return torch.nn.functional.gelu(x, approximate="tanh")
def _silu(x):
    return torch.nn.functional.silu(x)
def _sigmoid(x):
    return torch.sigmoid(x)
def _layernorm(x, axis=-1, eps=1e-5):
    m = x.mean(dim=axis, keepdim=True)
    v = x.var(dim=axis, keepdim=True, unbiased=False)
    return (x - m) / torch.sqrt(v + eps)
def _scatter_add(tgt, idx, src, axis=0):
    return tgt.clone().index_add_(axis, idx, src)
def _segment_sum(src, seg, n):
    out = torch.zeros((n,) + src.shape[1:], dtype=src.dtype)
    return out.index_add_(0, seg, src)
def _pad(x, pw):
    flat = tuple(v for pair in reversed(pw) for v in pair)
    return torch.nn.functional.pad(x, flat)

kernel_name = 'concat_heads__mha_block_cached__gqa_block_cached__near_ridge'

def setup_inputs():

    _w = (lambda a: (lambda t: t.to(torch.bfloat16) if t.is_floating_point() else t)(torch.as_tensor(a)))
    def _A_setup():
        B, Sq, D = 8, 160, 576
        H, Sk, Dh = 32, 512, 128
        return {
            "x": _w((lambda *s: torch.randn(*s, dtype=torch.bfloat16) * 0.8)(B, Sq, D)),
            "k_cache": _w((lambda *s: torch.randn(*s, dtype=torch.bfloat16) * 0.8)(B, H, Sk, Dh)),
            "v_cache": _w((lambda *s: torch.randn(*s, dtype=torch.bfloat16) * 0.05)(B, H, Sk, Dh)),
            "wq": _w((lambda *s: torch.randn(*s, dtype=torch.bfloat16) * 0.8)(D, H * Dh) * (D ** -0.5)),
            "wo": _w((lambda *s: torch.randn(*s, dtype=torch.bfloat16) * 0.05)(H * Dh, D) * ((H * Dh) ** -0.5)),
        }
    _A_in = _A_setup()

    def _B_setup():
        B, Sq, D = 8, 160, 576
        Hq, Hkv, Sk, Dh = 32, 32, 512, 128
        assert Hq % Hkv == 0, (Hq, Hkv)
        return {
            "x": _w((lambda *s: torch.randn(*s, dtype=torch.bfloat16) * 0.8)(B, Sq, D)),
            "k_cache": _w((lambda *s: torch.randn(*s, dtype=torch.bfloat16) * 0.8)(B, Hkv, Sk, Dh)),
            "v_cache": _w((lambda *s: torch.randn(*s, dtype=torch.bfloat16) * 0.05)(B, Hkv, Sk, Dh)),
            "wq": _w((lambda *s: torch.randn(*s, dtype=torch.bfloat16) * 0.8)(D, Hq * Dh) * (D ** -0.5)),
            "wo": _w((lambda *s: torch.randn(*s, dtype=torch.bfloat16) * 0.05)(Hq * Dh, D) * ((Hq * Dh) ** -0.5)),
        }
    _B_in = _B_setup()

    return {
        "A_x": _A_in["x"],
        "A_k_cache": _A_in["k_cache"],
        "A_v_cache": _A_in["v_cache"],
        "A_wq": _A_in["wq"],
        "A_wo": _A_in["wo"],
        "B_x": _B_in["x"],
        "B_k_cache": _B_in["k_cache"],
        "B_v_cache": _B_in["v_cache"],
        "B_wq": _B_in["wq"],
        "B_wo": _B_in["wo"],
    }

def reference(A_x, A_k_cache, A_v_cache, A_wq, A_wo, B_x, B_k_cache, B_v_cache, B_wq, B_wo):
    def _A_ref(x, k_cache, v_cache, wq, wo):
        B, Sq, D = x.shape
        H, Dh = 32, 128
        q = (lambda x, *d: x.permute(*d))((x @ wq).reshape(B, Sq, H, Dh), 0, 2, 1, 3)
        scores = torch.einsum("bhqd,bhkd->bhqk", q, k_cache) * (Dh ** -0.5)
        p = _softmax(scores, axis=-1)
        o = torch.einsum("bhqk,bhkd->bhqd", p, v_cache)
        return (lambda x, *d: x.permute(*d))(o, 0, 2, 1, 3).reshape(B, Sq, H * Dh) @ wo

    def _B_ref(x, k_cache, v_cache, wq, wo):
        B, Sq, D = x.shape
        Hq, Dh = 32, 128
        Hkv = k_cache.shape[1]
        rep = Hq // Hkv
        q = (lambda x, *d: x.permute(*d))((x @ wq).reshape(B, Sq, Hq, Dh), 0, 2, 1, 3)
        k = (lambda x, n, axis: torch.repeat_interleave(x, n, dim=axis))(k_cache, rep, axis=1)
        v = (lambda x, n, axis: torch.repeat_interleave(x, n, dim=axis))(v_cache, rep, axis=1)
        scores = torch.einsum("bhqd,bhkd->bhqk", q, k) * (Dh ** -0.5)
        p = _softmax(scores, axis=-1)
        o = torch.einsum("bhqk,bhkd->bhqd", p, v)
        return (lambda x, *d: x.permute(*d))(o, 0, 2, 1, 3).reshape(B, Sq, Hq * Dh) @ wo

    a = _A_ref(A_x, A_k_cache, A_v_cache, A_wq, A_wo)
    b = _B_ref(B_x, B_k_cache, B_v_cache, B_wq, B_wo)
    return torch.concatenate([a, b], axis=-1)
```

```python
import re

def v(a, n=1):
    return "v%d" % a if n == 1 else "v[%d:%d]" % (a, a + n - 1)
def s(a, n=1):
    return "s%d" % a if n == 1 else "s[%d:%d]" % (a, a + n - 1)

_reg_re = re.compile(r"^(-|\|)?(v|s|a)(\d+)\|?$")
_rng_re = re.compile(r"^(v|s|a)\[(\d+):(\d+)\]$")

def regs_of(tok):
    tok = tok.strip()
    if tok.startswith("abs(") and tok.endswith(")"):
        tok = tok[4:-1]
    if tok.startswith("-"):
        tok = tok[1:]
    m = _rng_re.match(tok)
    if m:
        return [(m.group(1), i) for i in range(int(m.group(2)), int(m.group(3)) + 1)]
    m = _reg_re.match(tok)
    if m:
        return [(m.group(2), int(m.group(3)))]
    if tok == "vcc":
        return [("s", 106), ("s", 107)]
    if tok == "vcc_lo": return [("s", 106)]
    if tok == "vcc_hi": return [("s", 107)]
    if tok == "exec":
        return [("s", 126), ("s", 127)]
    if tok == "m0":
        return [("s", 124)]
    return []

TRANS = ("v_exp_f32", "v_log_f32", "v_rcp_f32", "v_rsq_f32", "v_sqrt_f32", "v_sin_f32", "v_cos_f32")

class Ins:
    __slots__ = ("text", "op", "reads", "writes", "kind", "ws", "label", "comment")
    def __init__(self, text):
        self.text = text
        self.label = None

def classify(text):
    i = Ins(text)
    t = text.split(";")[0].strip()
    parts = t.split(None, 1)
    op = parts[0]
    i.op = op
    rest = parts[1] if len(parts) > 1 else ""
    ops = [o.strip() for o in rest.split(",")] if rest else []
    toks = []
    mods = []
    for k, o in enumerate(ops):
        sp = o.split()
        if not sp: continue
        toks.append(sp[0])
        mods += sp[1:]
    R = []; W = []
    def rd(ts):
        for x in ts: R.extend(regs_of(x))
    def wr(ts):
        for x in ts: W.extend(regs_of(x))
    i.ws = 1
    if op == "s_nop":
        i.kind = "nop"; i.ws = int(toks[0], 0) + 1
    elif op.startswith("v_mfma"):
        i.kind = "mfma"; wr(toks[:1]); rd(toks[1:])
    elif op.startswith("ds_"):
        i.kind = "ds"
        if op.startswith("ds_read") or op.startswith("ds_bpermute") or op.startswith("ds_swizzle") or op.startswith("ds_permute"):
            wr(toks[:1]); rd(toks[1:])
        elif "rtn" in op:
            wr(toks[:1]); rd(toks[1:])
        else:
            rd(toks)
    elif op.startswith("buffer_") or op.startswith("global_"):
        i.kind = "vmem"
        if op in ("buffer_inv", "buffer_wbl2"):
            pass
        elif op.startswith("buffer_load") or op.startswith("global_load"):
            if "lds" in mods or "_lds_" in op:
                rd(toks); R.append(("s", 124)); i.kind = "dma"
            else:
                wr(toks[:1]); rd(toks[1:])
        elif "atomic" in op and "sc0" in mods:
            wr(toks[:1]); rd(toks[1:])
        else:
            rd(toks)
            if op.endswith("x4") or op.endswith("x3"):
                i.kind = "wstore"
    elif op.startswith("v_"):
        i.kind = "valu"
        base = op.replace("_e32", "").replace("_e64", "")
        if base in TRANS: i.kind = "trans"
        if base.startswith("v_cmp"):
            wr(toks[:1]); rd(toks[1:])
            if base.startswith("v_cmpx"): W += regs_of("exec")
        elif base.startswith("v_permlane") and "swap" in base:
            wr(toks); rd(toks); i.kind = "permlane"
        elif base.startswith("v_readfirstlane") or base.startswith("v_readlane"):
            wr(toks[:1]); rd(toks[1:]); i.kind = "readlane"
        elif base in ("v_add_co_u32", "v_sub_co_u32", "v_addc_co_u32"):
            wr(toks[:2]); rd(toks[2:])
        elif base.startswith("v_fmac") or base.startswith("v_pk_fmac") or base.startswith("v_writelane"):
            wr(toks[:1]); rd(toks)
        else:
            wr(toks[:1]); rd(toks[1:])
            if base.startswith("v_cndmask") and len(toks) == 3:
                R += regs_of("vcc")
        if "dpp" in op or any(m.startswith("row_") or m.startswith("quad_perm") for m in mods):
            i.kind = "dpp"
            R += W
    elif op.startswith("s_"):
        i.kind = "salu"
        if op.startswith("s_load") or op.startswith("s_buffer_load") or op in ("s_memtime", "s_memrealtime"):
            i.kind = "smem"; wr(toks[:1]); rd(toks[1:])
        elif op.startswith("s_cmp") or op.startswith("s_cbranch") or op in ("s_branch", "s_barrier", "s_waitcnt", "s_endpgm", "s_sleep", "s_setprio", "s_setreg_b32"):
            rd(toks)
            if op.startswith("s_cbranch_vcc"): R += regs_of("vcc")
            if op.startswith("s_cbranch") or op == "s_branch": i.kind = "branch"
            if op == "s_waitcnt": i.kind = "wait"
            if op == "s_barrier": i.kind = "barrier"
        elif "saveexec" in op:
            wr(toks[:1]); rd(toks[1:]); W += regs_of("exec"); R += regs_of("exec")
        else:
            wr(toks[:1]); rd(toks[1:])
    else:
        raise ValueError("unknown op " + text)
    i.reads = set(R); i.writes = set(W)
    return i

VALU_KINDS = ("valu", "trans", "permlane", "readlane", "dpp")
MFMA_PASS = {"v_mfma_f32_16x16x32_bf16": 4, "v_mfma_f32_32x32x16_bf16": 8}
RAW_VALU = {4: 8, 8: 12}
SRCC_OVL = {4: 6, 8: 10}
WAR_C = {4: 3, 8: 7}

def isv(r): return r[0] in ("v", "a")

def need(prev, cur):
    n = 0
    pk, ck = prev.kind, cur.kind
    pw, pr, cw, cr = prev.writes, prev.reads, cur.writes, cur.reads
    if pk in VALU_KINDS:
        vw = {r for r in pw if isv(r)}
        sw = {r for r in pw if r[0] == "s"}
        if vw:
            if ck == "mfma" and (vw & cr): n = max(n, 2)
            if ck == "permlane" and (vw & cr): n = max(n, 2)
            if ck == "dpp" and (vw & cr): n = max(n, 2)
            if ck == "readlane" and (vw & cr): n = max(n, 1)
            if pk == "trans" and ck in VALU_KINDS + ("mfma",) and ck != "trans" and (vw & cr): n = max(n, 1)
            if pk == "trans" and ck == "trans" and (vw & cr): n = max(n, 1)
        if sw:
            if ck in VALU_KINDS + ("mfma",) and (sw & cr): n = max(n, 2)
            if ck == "readlane" and (sw & cr): n = max(n, 4)
            if ck in ("vmem", "dma", "wstore") and (sw & cr): n = max(n, 5)
            if ck in ("salu", "branch") and (sw & cr): n = max(n, 1)
            if (("s", 126) in sw):
                if ck in ("mfma", "readlane", "permlane"): n = max(n, 4)
                if ck == "dpp": n = max(n, 5)
    if pk == "salu":
        if ("s", 124) in pw and ck == "dma": n = max(n, 1)
        if (("s", 126) in pw or ("s", 127) in pw) and ck == "mfma": n = max(n, 4)
        if (("s", 126) in pw or ("s", 127) in pw) and ck == "dpp": n = max(n, 5)
    if pk == "mfma":
        P = MFMA_PASS[prev.op]
        D = pw
        if ck == "mfma":
            toks = [o.strip() for o in cur.text.split(";")[0].split(None, 1)[1].split(",")]
            A = set(regs_of(toks[1])) | set(regs_of(toks[2]))
            C = set(regs_of(toks[3]))
            if D & A: n = max(n, RAW_VALU[P])
            if D & C:
                if D == C and prev.op == cur.op: pass
                else: n = max(n, SRCC_OVL[P])
            if (D & cw) and not (D == cw):
                n = max(n, SRCC_OVL[P])
            if (D & cw) and D == cw and C != D: n = max(n, RAW_VALU[P])
        elif ck in VALU_KINDS or ck in ("ds", "vmem", "dma", "wstore"):
            if (D & cr) or (D & cw): n = max(n, RAW_VALU[P])
        if ck in VALU_KINDS:
            toks = [o.strip() for o in prev.text.split(";")[0].split(None, 1)[1].split(",")]
            C = set(regs_of(toks[3]))
            if C & cw: n = max(n, WAR_C[P])
    if pk == "wstore":
        if ck in VALU_KINDS and ({r for r in pr if isv(r)} & cw): n = max(n, 2)
        elif ({r for r in pr if isv(r)} & cw): n = max(n, 1)
    return n

class Asm:
    def __init__(self):
        self.out = []
        self.lds_out = []
        self.nnop = 0
        self.uid = 0
        self.auto_lgkm = True
    def newlabel(self, base):
        self.uid += 1
        return "L_%s_%d" % (base, self.uid)
    def raw(self, text):
        self.out.append(text)
    def comment(self, text):
        self.out.append("    ; " + text)
    def label(self, name, keep=False):
        if not keep:
            assert not self.lds_out, "LDS ops outstanding at label %s" % name
        self.out.append(name + ":")
    def _hist(self):
        res = []; tot = 0
        for x in reversed(self.out):
            if isinstance(x, str): continue
            res.append(x); tot += x.ws
            if tot > 24: break
        return res
    def _push(self, i):
        self.out.append(i)
    def op(self, text):
        i = classify(text)
        if i.kind == "wait":
            m = re.search(r"lgkmcnt\((\d+)\)", text)
            if m:
                n = int(m.group(1))
                while len(self.lds_out) > n: self.lds_out.pop(0)
        elif self.auto_lgkm and self.lds_out:
            touch = i.reads | i.writes
            idx = -1
            for k, d in enumerate(self.lds_out):
                if d & touch: idx = k
            if idx >= 0:
                n = len(self.lds_out) - 1 - idx
                n = min(n, 15)
                w = classify("s_waitcnt lgkmcnt(%d)" % n)
                self._push(w)
                while len(self.lds_out) > n: self.lds_out.pop(0)
        if i.kind in ("barrier",):
            pass
        dist = 0; req = 0
        for p in self._hist():
            nd = need(p, i)
            if nd > dist: req = max(req, nd - dist)
            dist += p.ws
        while req > 0:
            k = min(req, 16)
            self._push(classify("s_nop %d" % (k - 1))); self.nnop += 1
            req -= k
        self._push(i)
        if i.kind == "ds":
            self.lds_out.append({r for r in i.writes})
        if i.kind == "smem":
            pass
        return i
    def __call__(self, text):
        for line in text.strip().split("\n"):
            line = line.strip()
            if not line or line.startswith(";"): continue
            self.op(line)
    def waitlds(self, n=0):
        self.op("s_waitcnt lgkmcnt(%d)" % n)
    def nop(self, n):
        while n > 0:
            k = min(n, 16); self.op("s_nop %d" % (k - 1)); n -= k
    def text(self):
        res = []
        for x in self.out:
            res.append(x if isinstance(x, str) else "    " + x.text)
        return "\n".join(res) + "\n"
    def check_backedge(self, label):
        pos = None
        for k, x in enumerate(self.out):
            if isinstance(x, str) and x == label + ":": pos = k
        assert pos is not None
        bpos = None
        for k, x in enumerate(self.out):
            if not isinstance(x, str) and x.kind == "branch" and x.text.split()[-1] == label and k > pos: bpos = k
        assert bpos is not None
        tail = [x for x in self.out[max(pos, bpos - 60):bpos + 1] if not isinstance(x, str)]
        head = [x for x in self.out[pos:pos + 80] if not isinstance(x, str)]
        d_head = 0
        for h in head:
            dist = d_head
            for p in reversed(tail):
                nd = need(p, h)
                if nd > dist:
                    raise AssertionError("backedge hazard %s -> %s need %d have %d" % (p.text, h.text, nd, dist))
                dist += p.ws
                if dist > 24: break
            d_head += h.ws
            if d_head > 24: break
```

```python
import sys, math
sys.path.insert(0, "dev")
from emit import *

KNAME = "concat_heads__mha_block_cached__gqa_block_cached__near_ridge_kernel"
HDR = open("concat_heads__mha_block_cached__gqa_block_cached__near_ridge.s.ref").read().split("; Override launch")[0]

class Cfg:
    kvflags = "nt"
    stflags = ""
    stamps = False
    thr = 16384.0

NSLOT = 7
SLOT = 16384
WB = 49152
XB = 114688
LDS_TOTAL = 163840

WS_OF = 0
WS_PT = 32 << 20
WS_ST = 96 << 20

QSCALE = 1.4426950408889634 / math.sqrt(128.0)

def f32(x):
    import struct
    return "0x%08x" % struct.unpack("<I", struct.pack("<f", x))[0]

S_ID = 2
SRD_X, SRD_WQ, SRD_K, SRD_V, SRD_WO, SRD_WS = 8, 12, 16, 20, 24, 28
S_W = 33; S_BR = 34; S_B = 35; S_P = 36; S_XH = 37; S_J4 = 38
S_N0 = 39
S_GI = 40
S_T = 41
S_SLOT = 42
S_ISLOT = 43
S_IT = 44
S_TMP = 45; S_TMP2 = 46; S_TMP3 = 47
S_FIRST = 48
S_FLOOR = 50
S_THR = 51
S_ODD = 52
S_XD = 54
S_WD = 55
S_HEAD = 56
S_KAP = 57
S_OOFF = 58
S_ST0 = 60
S_EXEC = 70

def common_ids(a):
    a("s_and_b32 s3, s2, 7")
    a("s_lshr_b32 %s, s3, 2" % s(S_BR))
    a("s_and_b32 %s, s3, 3" % s(S_XH))
    a("s_lshr_b32 s4, s2, 3")
    a("s_and_b32 %s, s4, 7" % s(S_B))
    a("s_lshr_b32 %s, s4, 3" % s(S_J4))
    a("s_lshl_b32 %s, %s, 2" % (s(S_P), s(S_XH)))
    a("s_add_u32 %s, %s, %s" % (s(S_P), s(S_P), s(S_J4)))

def stamp(a, idx, cfg):
    if cfg.stamps:
        a("s_memrealtime %s" % s(S_ST0 + 2 * idx, 2))

V_LANE = 1
V_T0 = 2
V_KB = 10; V_VB = 11
V_L = 12
V_TS = 15
V_TMP4 = 16
V_A = 20
V_NEGM = 28
V_VF = 40
V_KF = 56
V_S = 88
V_Q = 112
V_O = 160

def Oreg(n, db): return V_O + n * 32 + db * 4
def Qreg(n, t): return V_Q + n * 16 + t * 4
def Sreg(n, k): return V_S + n * 8 + k * 4
def Kreg(k, t): return V_KF + (k * 4 + t) * 4
def NM(n): return V_NEGM + 4 * n

def mfma(a, d, x, y, c):
    cs = c if isinstance(c, str) else v(c, 4)
    a("v_mfma_f32_16x16x32_bf16 %s, %s, %s, %s" % (v(d, 4), v(x, 4), v(y, 4), cs))

def qproj(a, NQ, cfg):
    WF = [56, 112]; XF = [88, 100]
    VWA = 20; VX0, VX1 = 10, 11
    VDW0, VDW1, VDX0, VDX1 = 28, 29, 30, 31
    lane = V_LANE
    lab = a.newlabel("qp")
    a("v_lshrrev_b32 v2, 4, v%d" % lane)
    a("v_bfe_u32 v3, v%d, 2, 2" % lane)
    a("v_and_b32 v4, 3, v%d" % lane)
    a("v_lshlrev_b32 v5, 3, v2")
    a("v_add_u32 v5, v5, v3")
    a("v_and_b32 v6, 1, v3")
    a("v_lshrrev_b32 v7, 1, v3")
    a("v_lshlrev_b32 v7, 2, v7")
    a("v_or_b32 v6, v6, v7")
    a("v_and_b32 v7, 1, v2")
    a("v_lshlrev_b32 v7, 3, v7")
    a("v_or_b32 v6, v6, v7")
    a("v_xor_b32 v6, v6, v4")
    a("v_lshlrev_b32 v6, 4, v6")
    a("v_lshlrev_b32 v5, 8, v5")
    a("v_add_u32 v5, v5, v6")
    a("v_and_b32 v6, 1, v4")
    a("v_lshlrev_b32 v6, 3, v6")
    a("v_add_u32 v5, v5, v6")
    a("s_lshr_b32 %s, %s, 2" % (s(S_TMP), s(S_W)))
    a("s_lshl_b32 %s, %s, 13" % (s(S_TMP), s(S_TMP)))
    a("s_add_u32 %s, %s, %d" % (s(S_TMP), s(S_TMP), WB))
    a("v_add_u32 v5, %s, v5" % s(S_TMP))
    for t in range(4):
        for e in range(2):
            x = (t << 6) ^ (e << 3)
            if x == 0: a("v_mov_b32 v%d, v5" % (VWA + 0))
            else: a("v_xor_b32 v%d, %d, v5" % (VWA + t * 2 + e, x))
    a("v_and_b32 v6, 15, v%d" % lane)
    a("v_lshrrev_b32 v7, 1, v6")
    a("v_xor_b32 v7, v7, v2")
    a("v_lshlrev_b32 v7, 4, v7")
    a("v_lshlrev_b32 v6, 7, v6")
    a("v_add_u32 v6, v6, v7")
    a("s_lshl_b32 %s, %s, 11" % (s(S_TMP), s(S_N0)))
    a("s_add_u32 %s, %s, %d" % (s(S_TMP), s(S_TMP), XB))
    a("v_add_u32 v%d, %s, v6" % (VX0, s(S_TMP)))
    a("v_xor_b32 v%d, 64, v%d" % (VX1, VX0))
    a("v_and_b32 v6, 1, v2")
    a("v_lshrrev_b32 v7, 1, v2")
    a("v_lshlrev_b32 v7, 2, v7")
    a("v_or_b32 v6, v6, v7")
    a("v_and_b32 v7, 15, v%d" % lane)
    a("v_xor_b32 v6, v6, v7")
    a("v_lshlrev_b32 v6, 4, v6")
    a("v_lshlrev_b32 v7, 13, v2")
    a("v_add_u32 v%d, v6, v7" % VDW0)
    a("v_xor_b32 v%d, 128, v%d" % (VDW1, VDW0))
    a("v_lshrrev_b32 v6, 3, v%d" % lane)
    a("v_mul_u32_u24 v6, 1152, v6")
    a("v_and_b32 v7, 7, v%d" % lane)
    a("v_xor_b32 v7, v7, v2")
    a("v_lshlrev_b32 v7, 4, v7")
    a("v_add_u32 v%d, v6, v7" % VDX0)
    a("v_xor_b32 v%d, 64, v%d" % (VDX1, VDX0))
    for i in range(NQ * 32):
        a("v_mov_b32 v%d, 0" % (V_O + i))

    S_WQS = 72
    S_WQL = 73
    S_XS = 74
    S_XL = 75
    a("s_and_b32 %s, %s, 1" % (s(S_TMP), s(S_GI)))
    a("s_lshr_b32 %s, %s, 1" % (s(S_TMP2), s(S_GI)))
    a("s_lshl_b32 %s, %s, 17" % (s(S_WQS), s(S_TMP)))
    a("s_lshl_b32 %s, %s, 1" % (s(S_TMP3), s(S_P)))
    a("s_add_u32 %s, %s, %s" % (s(S_TMP3), s(S_TMP3), s(S_TMP2)))
    a("s_lshl_b32 %s, %s, 8" % (s(S_TMP3), s(S_TMP3)))
    a("s_add_u32 %s, %s, %s" % (s(S_WQS), s(S_WQS), s(S_TMP3)))
    a("s_lshl_b32 %s, %s, 12" % (s(S_WQL), s(S_TMP)))
    a("s_lshl_b32 %s, %s, 13" % (s(S_TMP2), s(S_TMP2)))
    a("s_add_u32 %s, %s, %s" % (s(S_WQL), s(S_WQL), s(S_TMP2)))
    a("s_add_u32 %s, %s, %d" % (s(S_WQL), s(S_WQL), WB))
    a("s_mul_i32 %s, %s, %d" % (s(S_XS), s(S_GI), 5 * 9216))
    a("s_mul_i32 %s, %s, %d" % (s(S_XL), s(S_GI), 5 * 1024))
    a("s_add_u32 %s, %s, %d" % (s(S_XL), s(S_XL), XB))

    def dma_wq(kap_s, slot_s):
        for i in range(4):
            a("s_add_u32 %s, %s, %s" % (s(S_TMP), s(kap_s), s(S_WQS)))
            if i: a("s_add_u32 %s, %s, %d" % (s(S_TMP), s(S_TMP), i * 32768))
            a("s_add_u32 %s, %s, %s" % (s(S_TMP2), s(slot_s), s(S_WQL)))
            if i: a("s_add_u32 %s, %s, %d" % (s(S_TMP2), s(S_TMP2), i * 1024))
            a("s_mov_b32 m0, %s" % s(S_TMP2))
            a("buffer_load_dwordx4 v%d, %s, %s offen lds" % (VDW0 if i < 2 else VDW1, s(SRD_WQ, 4), s(S_TMP)))
    def dma_x(c_s, slot_s):
        for i in range(5):
            a("s_add_u32 %s, %s, %s" % (s(S_TMP), s(c_s), s(S_XS)))
            if i: a("s_add_u32 %s, %s, %d" % (s(S_TMP), s(S_TMP), i * 9216))
            a("s_add_u32 %s, %s, %s" % (s(S_TMP2), s(slot_s), s(S_XL)))
            if i: a("s_add_u32 %s, %s, %d" % (s(S_TMP2), s(S_TMP2), i * 1024))
            a("s_mov_b32 m0, %s" % s(S_TMP2))
            a("buffer_load_dwordx4 v%d, %s, %s offen lds" % (VDX0 if i % 2 == 0 else VDX1, s(SRD_X, 4), s(S_TMP)))
    a("s_and_b32 %s, %s, 1" % (s(S_TMP), s(S_GI)))
    a("s_lshl_b32 %s, %s, 6" % (s(S_TMP), s(S_TMP)))
    a("v_xor_b32 v%d, %s, v%d" % (VDX0, s(S_TMP), VDX0))
    a("v_xor_b32 v%d, %s, v%d" % (VDX1, s(S_TMP), VDX1))

    S_KW = 76; S_SW = 77; S_CX = 78; S_SX = 79
    lskip = a.newlabel("qp_nodma0")
    a("s_cmp_lt_u32 %s, 4" % s(S_W))
    a("s_cbranch_scc1 %s" % lskip)
    a("s_mov_b32 %s, 0" % s(S_CX)); a("s_mov_b32 %s, 0" % s(S_SX)); dma_x(S_CX, S_SX)
    a("s_mov_b32 %s, 0" % s(S_KW)); a("s_mov_b32 %s, 0" % s(S_SW)); dma_wq(S_KW, S_SW)
    a("s_mov_b32 %s, 262144" % s(S_KW)); a("s_mov_b32 %s, 16384" % s(S_SW)); dma_wq(S_KW, S_SW)
    a("s_mov_b32 %s, 128" % s(S_CX)); a("s_mov_b32 %s, 20480" % s(S_SX)); dma_x(S_CX, S_SX)
    a("s_mov_b32 %s, %d" % (s(S_KW), 2 * 262144)); a("s_mov_b32 %s, 32768" % s(S_SW)); dma_wq(S_KW, S_SW)
    a("s_mov_b32 %s, %d" % (s(S_KW), 3 * 262144)); a("s_mov_b32 %s, 49152" % s(S_SW)); dma_wq(S_KW, S_SW)
    a("s_waitcnt vmcnt(13)")
    a.label(lskip)
    a("s_barrier")
    a("s_mov_b32 %s, %d" % (s(S_KW), 4 * 262144)); a("s_mov_b32 %s, 0" % s(S_SW))
    a("s_mov_b32 %s, 256" % s(S_CX)); a("s_mov_b32 %s, 0" % s(S_SX))
    a("s_mov_b32 %s, 20480" % s(S_XD))
    a("s_mov_b32 %s, 32768" % s(S_WD))

    def read_frags(fs, sub, woff):
        ops = []
        for n in range(NQ):
            ops.append("ds_read_b128 %s, v%d offset:%d" % (v(XF[fs] + 4 * n, 4), VX1 if sub else VX0, n * 2048))
        for be in range(8):
            ops.append("ds_read_b64_tr_b16 %s, v%d offset:%d" % (v(WF[fs] + 4 * be, 2), VWA + be, woff))
            ops.append("ds_read_b64_tr_b16 %s, v%d offset:%d" % (v(WF[fs] + 4 * be + 2, 2), VWA + be, woff + 1024))
        return ops
    def mfmas(fs):
        ops = []
        for be in range(8):
            for n in range(NQ):
                ops.append("v_mfma_f32_16x16x32_bf16 %s, %s, %s, %s" % (v(V_O + n * 32 + be * 4, 4), v(WF[fs] + 4 * be, 4), v(XF[fs] + 4 * n, 4), v(V_O + n * 32 + be * 4, 4)))
        return ops
    def interleave(ms, rs):
        out = []
        for i, m in enumerate(ms):
            out.append(m)
            if i < len(rs): out.append(rs[i])
        out += rs[len(ms):]
        return out
    for o in read_frags(0, 0, 0): a(o)
    a.waitlds(0)
    a("s_mov_b32 %s, 0" % s(S_T))
    a.label(lab)
    a("s_barrier")
    l1 = a.newlabel("qp_nd1")
    a("s_cmp_lt_u32 %s, 4" % s(S_W))
    a("s_cbranch_scc1 %s" % l1)
    dma_wq(S_KW, S_SW)
    a("s_add_u32 %s, %s, 262144" % (s(S_KW), s(S_KW)))
    a("s_add_u32 %s, %s, 16384" % (s(S_SW), s(S_SW)))
    a("s_and_b32 %s, %s, 0xffff" % (s(S_SW), s(S_SW)))
    a.label(l1)
    for o in interleave(mfmas(0), read_frags(1, 1, 16384)): a(o)
    for be in range(8):
        a("v_add_u32 v%d, %s, v%d" % (VWA + be, s(S_WD), VWA + be))
    a("v_add_u32 v%d, %s, v%d" % (VX0, s(S_XD), VX0))
    a("v_add_u32 v%d, %s, v%d" % (VX1, s(S_XD), VX1))
    a("s_sub_u32 %s, 0, %s" % (s(S_WD), s(S_WD)))
    a("s_sub_u32 %s, 0, %s" % (s(S_XD), s(S_XD)))
    a.waitlds(0)
    l2 = a.newlabel("qp_nw1")
    a("s_cmp_lt_u32 %s, 4" % s(S_W))
    a("s_cbranch_scc1 %s" % l2)
    a("s_waitcnt vmcnt(4)")
    a.label(l2)
    a("s_barrier")
    l3 = a.newlabel("qp_nd2")
    a("s_cmp_lt_u32 %s, 4" % s(S_W))
    a("s_cbranch_scc1 %s" % l3)
    dma_wq(S_KW, S_SW)
    a("s_add_u32 %s, %s, 262144" % (s(S_KW), s(S_KW)))
    a("s_add_u32 %s, %s, 16384" % (s(S_SW), s(S_SW)))
    a("s_and_b32 %s, %s, 0xffff" % (s(S_SW), s(S_SW)))
    dma_x(S_CX, S_SX)
    a("s_add_u32 %s, %s, 128" % (s(S_CX), s(S_CX)))
    a("s_sub_u32 %s, 20480, %s" % (s(S_SX), s(S_SX)))
    a.label(l3)
    for o in interleave(mfmas(1), read_frags(0, 0, 0)): a(o)
    a.waitlds(0)
    l4 = a.newlabel("qp_nw2")
    a("s_cmp_lt_u32 %s, 4" % s(S_W))
    a("s_cbranch_scc1 %s" % l4)
    a("s_waitcnt vmcnt(13)")
    a.label(l4)
    a("s_add_u32 %s, %s, 1" % (s(S_T), s(S_T)))
    a("s_cmp_lt_u32 %s, 9" % s(S_T))
    a("s_cbranch_scc1 %s" % lab)
    a.check_backedge(lab)
    a("s_mov_b32 %s, %s" % (s(S_TMP), f32(QSCALE)))
    for n in range(NQ):
        for t in range(4):
            e0 = V_O + n * 32 + (2 * t) * 4; e1 = e0 + 4
            for i in range(4):
                a("v_mul_f32 v%d, %s, v%d" % (e0 + i, s(S_TMP), e0 + i))
                a("v_mul_f32 v%d, %s, v%d" % (e1 + i, s(S_TMP), e1 + i))
            a("v_cvt_pk_bf16_f32 v2, v%d, v%d" % (e0, e0 + 1))
            a("v_cvt_pk_bf16_f32 v3, v%d, v%d" % (e0 + 2, e0 + 3))
            a("v_cvt_pk_bf16_f32 v4, v%d, v%d" % (e1, e1 + 1))
            a("v_cvt_pk_bf16_f32 v5, v%d, v%d" % (e1 + 2, e1 + 3))
            q = Qreg(n, t)
            a("v_cndmask_b32 v%d, v2, v4, %s" % (q + 0, s(S_ODD, 2)))
            a("v_cndmask_b32 v%d, v3, v5, %s" % (q + 1, s(S_ODD, 2)))
            a("v_cndmask_b32 v%d, v4, v2, %s" % (q + 2, s(S_ODD, 2)))
            a("v_cndmask_b32 v%d, v5, v3, %s" % (q + 3, s(S_ODD, 2)))

def attn_tick_compute(a, NQ, cfg, rare_labels):
    A = V_A
    a("v_add_u32 v%d, %s, v%d" % (A + 0, s(S_SLOT), V_KB))
    for t in range(1, 4):
        a("v_xor_b32 v%d, %d, v%d" % (A + t, t << 6, A + 0))
    for k in range(2):
        for t in range(4):
            a("ds_read_b128 %s, v%d offset:%d" % (v(Kreg(k, t), 4), A + t, k * 4096))
    a("v_add_u32 v%d, %s, v%d" % (A + 4, s(S_SLOT), V_VB))
    def vread(db, dst, areg):
        if db == 0: pass
        else: a("v_xor_b32 v%d, %d, v%d" % (areg, db << 5, A + 4))
        src = A + 4 if db == 0 else areg
        a("ds_read_b64_tr_b16 %s, v%d" % (v(dst, 2), src))
        a("ds_read_b64_tr_b16 %s, v%d offset:4096" % (v(dst + 2, 2), src))
    for db in range(4):
        vread(db, V_VF + 4 * db, A + 5 + (db % 3))
    def qk(n):
        ops = []
        for t in range(4):
            for k in range(2):
                c = v(NM(n), 4) if t == 0 else v(Sreg(n, k), 4)
                ops.append("v_mfma_f32_16x16x32_bf16 %s, %s, %s, %s" % (v(Sreg(n, k), 4), v(Kreg(k, t), 4), v(Qreg(n, t), 4), c))
        return ops
    def sm_a(n):
        S = V_S + n * 8
        ops = []
        for i in range(8): ops.append("v_exp_f32 v%d, v%d" % (S + i, S + i))
        T = V_TS
        ops.append("v_add_f32 v2, v%d, v%d" % (S, S + 1))
        ops.append("v_add_f32 v3, v%d, v%d" % (S + 2, S + 3))
        ops.append("v_add_f32 v4, v%d, v%d" % (S + 4, S + 5))
        ops.append("v_add_f32 v5, v%d, v%d" % (S + 6, S + 7))
        ops.append("v_add_f32 v2, v2, v3")
        ops.append("v_add_f32 v4, v4, v5")
        ops.append("v_add_f32 v%d, v2, v4" % T)
        ops.append("v_cmp_lt_f32 vcc, %s, v%d" % (s(S_THR), T))
        return ops
    def sm_chk(n):
        a("s_or_b64 vcc, vcc, %s" % s(S_FIRST, 2))
        a("s_cbranch_vccnz %s" % rare_labels[n][0])
        a.label(rare_labels[n][1], keep=True)
    def sm_b(n):
        S = V_S + n * 8
        ops = ["v_add_f32 v%d, v%d, v%d" % (V_L + n, V_L + n, V_TS)]
        ops.append("v_cvt_pk_bf16_f32 v%d, v%d, v%d" % (S + 0, S + 0, S + 1))
        ops.append("v_cvt_pk_bf16_f32 v%d, v%d, v%d" % (S + 1, S + 2, S + 3))
        ops.append("v_cvt_pk_bf16_f32 v%d, v%d, v%d" % (S + 2, S + 4, S + 5))
        ops.append("v_cvt_pk_bf16_f32 v%d, v%d, v%d" % (S + 3, S + 6, S + 7))
        return ops
    def pv(n, dbs, vbase):
        return ["v_mfma_f32_16x16x32_bf16 %s, %s, %s, %s" % (v(Oreg(n, db), 4), v(vbase + 4 * (db % 4), 4), v(V_S + n * 8, 4), v(Oreg(n, db), 4)) for db in dbs]
    def mix(ms, vs, lead=0):
        if not ms:
            for o in vs: a(o)
            return
        per = len(vs) / float(len(ms))
        acc = 0.0; j = 0
        for i, m in enumerate(ms):
            a(m)
            acc += per
            while j < len(vs) and j < acc - 1e-9:
                a(vs[j]); j += 1
        while j < len(vs):
            a(vs[j]); j += 1
    def vhi():
        for db in range(4, 8):
            vread(db, V_KF + 4 * (db - 4), A + 5 + (db % 3))
    LO = range(4); HI = range(4, 8)
    if NQ == 3:
        for o in qk(0): a(o)
        for o in qk(1): a(o)
        mix(qk(2), sm_a(0)); sm_chk(0)
        vhi()
        for o in sm_b(0): a(o)
        mix(pv(0, LO, V_VF), sm_a(1)); sm_chk(1)
        for o in sm_b(1): a(o)
        mix(pv(1, LO, V_VF) + pv(0, HI, V_KF), sm_a(2)); sm_chk(2)
        for o in sm_b(2): a(o)
        for o in pv(1, HI, V_KF) + pv(2, LO, V_VF) + pv(2, HI, V_KF): a(o)
    else:
        for o in qk(0): a(o)
        for o in qk(1): a(o)
        vhi()
        for o in sm_a(0): a(o)
        sm_chk(0)
        for o in sm_b(0): a(o)
        mix(pv(0, LO, V_VF) + pv(0, HI, V_KF), sm_a(1)); sm_chk(1)
        for o in sm_b(1): a(o)
        for o in pv(1, LO, V_VF) + pv(1, HI, V_KF): a(o)

def rare_path(a, n, labels):
    S = V_S + n * 8
    a.label(labels[0])
    a("s_waitcnt lgkmcnt(0)")
    a.nop(10)
    T4 = V_TMP4
    a("v_add_u32 v2, %s, v%d" % (s(S_SLOT), V_KB))
    for k in range(2):
        for t in range(4):
            a("v_xor_b32 v3, %d, v2" % (t << 6))
            a("ds_read_b128 %s, v3 offset:%d" % (v(T4, 4), k * 4096))
            c = v(NM(n), 4) if t == 0 else v(Sreg(n, k), 4)
            a("v_mfma_f32_16x16x32_bf16 %s, %s, %s, %s" % (v(Sreg(n, k), 4), v(T4, 4), v(Qreg(n, t), 4), c))
            a.nop(4)
    a.nop(8)
    a("v_max3_f32 v2, v%d, v%d, v%d" % (S, S + 1, S + 2))
    a("v_max3_f32 v2, v2, v%d, v%d" % (S + 3, S + 4))
    a("v_max3_f32 v2, v2, v%d, v%d" % (S + 5, S + 6))
    a("v_max_f32 v2, v2, v%d" % (S + 7))
    a("v_xor_b32 v3, 16, v%d" % V_LANE)
    a("v_lshlrev_b32 v3, 2, v3")
    a("ds_bpermute_b32 v4, v3, v2")
    a("v_max_f32 v2, v2, v4")
    a("v_xor_b32 v3, 32, v%d" % V_LANE)
    a("v_lshlrev_b32 v3, 2, v3")
    a("ds_bpermute_b32 v4, v3, v2")
    a("v_max_f32 v2, v2, v4")
    a("v_max_f32 v2, %s, v2" % s(S_FLOOR))
    a("v_max_f32 v3, 0, v2")
    a("v_sub_f32 v3, 0, v3")
    a("v_exp_f32 v3, v3")
    for i in range(4):
        a("v_sub_f32 v%d, v%d, v2" % (NM(n) + i, NM(n) + i))
    for i in range(8):
        a("v_sub_f32 v%d, v%d, v2" % (S + i, S + i))
    for i in range(8):
        a("v_exp_f32 v%d, v%d" % (S + i, S + i))
    for i in range(32):
        a("v_mul_f32 v%d, v%d, v3" % (V_O + n * 32 + i, V_O + n * 32 + i))
    a("v_mul_f32 v%d, v%d, v3" % (V_L + n, V_L + n))
    a("v_add_f32 v2, v%d, v%d" % (S, S + 1))
    a("v_add_f32 v3, v%d, v%d" % (S + 2, S + 3))
    a("v_add_f32 v4, v%d, v%d" % (S + 4, S + 5))
    a("v_add_f32 v5, v%d, v%d" % (S + 6, S + 7))
    a("v_add_f32 v2, v2, v3")
    a("v_add_f32 v4, v4, v5")
    a("v_add_f32 v%d, v2, v4" % V_TS)
    a.nop(4)
    a("s_branch %s" % labels[1])

def attn_epilogue(a, NQ, cfg):
    a.nop(8)
    a("v_lshlrev_b32 v6, 4, v%d" % V_LANE)
    for n in range(NQ):
        L = V_L + n
        a("v_xor_b32 v3, 16, v%d" % V_LANE)
        a("v_lshlrev_b32 v3, 2, v3")
        a("ds_bpermute_b32 v4, v3, v%d" % L)
        a("v_add_f32 v%d, v%d, v4" % (L, L))
        a("v_xor_b32 v3, 32, v%d" % V_LANE)
        a("v_lshlrev_b32 v3, 2, v3")
        a("ds_bpermute_b32 v4, v3, v%d" % L)
        a("v_add_f32 v%d, v%d, v4" % (L, L))
        a("v_rcp_f32 v%d, v%d" % (L, L))
        for u in range(4):
            o0 = Oreg(n, 2 * u); o1 = o0 + 4
            for i in range(8):
                a("v_mul_f32 v%d, v%d, v%d" % (o0 + i, o0 + i, L))
            d = V_TMP4 if (u % 2 == 0) else V_A
            a("v_cvt_pk_bf16_f32 v%d, v%d, v%d" % (d + 0, o0, o0 + 1))
            a("v_cvt_pk_bf16_f32 v%d, v%d, v%d" % (d + 1, o0 + 2, o0 + 3))
            a("v_cvt_pk_bf16_f32 v%d, v%d, v%d" % (d + 2, o1, o1 + 1))
            a("v_cvt_pk_bf16_f32 v%d, v%d, v%d" % (d + 3, o1 + 2, o1 + 3))
            a("s_add_u32 %s, %s, %d" % (s(S_TMP), s(S_OOFF), (u * 10 + n) * 1024))
            a("buffer_store_dwordx4 %s, v6, %s, %s offen %s" % (v(d, 4), s(SRD_WS, 4), s(S_TMP), cfg.stflags))

def attn_reset(a, NQ):
    for n in range(NQ):
        for i in range(32): a("v_mov_b32 v%d, 0" % (V_O + n * 32 + i))
        for i in range(4): a("v_mov_b32 v%d, 0" % (NM(n) + i))
        a("v_mov_b32 v%d, 0" % (V_L + n))
    a("s_mov_b64 %s, -1" % s(S_FIRST, 2))
    a("s_mov_b32 %s, 0xff800000" % s(S_FLOOR))

def attn_wave(a, NQ, cfg):
    lane = V_LANE
    a("v_lshrrev_b32 v2, 4, v%d" % lane)
    a("v_and_b32 v3, 15, v%d" % lane)
    a("v_xor_b32 v4, v2, v3")
    a("v_lshlrev_b32 v4, 4, v4")
    a("v_lshlrev_b32 v3, 8, v3")
    a("v_add_u32 v%d, v3, v4" % V_KB)
    a("v_bfe_u32 v3, v%d, 2, 2" % lane)
    a("v_and_b32 v4, 3, v%d" % lane)
    a("v_lshlrev_b32 v5, 2, v2")
    a("v_add_u32 v5, v5, v3")
    a("v_and_b32 v6, 7, v5")
    a("v_lshlrev_b32 v6, 1, v6")
    a("v_lshrrev_b32 v7, 1, v4")
    a("v_xor_b32 v6, v6, v7")
    a("v_lshlrev_b32 v6, 4, v6")
    a("v_lshlrev_b32 v5, 8, v5")
    a("v_add_u32 v5, v5, v6")
    a("v_and_b32 v6, 1, v4")
    a("v_lshlrev_b32 v6, 3, v6")
    a("v_add_u32 v5, v5, v6")
    a("v_add_u32 v%d, 8192, v5" % V_VB)
    a("s_mov_b32 %s, %s" % (s(S_THR), f32(cfg.thr)))
    a("s_lshl_b32 %s, %s, 3" % (s(S_TMP), s(S_BR)))
    a("s_add_u32 %s, %s, %s" % (s(S_TMP), s(S_TMP), s(S_B)))
    a("s_lshl_b32 %s, %s, 5" % (s(S_TMP), s(S_TMP)))
    a("s_lshl_b32 %s, %s, 1" % (s(S_TMP2), s(S_P)))
    a("s_add_u32 %s, %s, %s" % (s(S_TMP), s(S_TMP), s(S_TMP2)))
    a("s_mul_i32 %s, %s, 40" % (s(S_TMP), s(S_TMP)))
    a("s_add_u32 %s, %s, %s" % (s(S_TMP), s(S_TMP), s(S_N0)))
    a("s_lshl_b32 %s, %s, 10" % (s(S_OOFF), s(S_TMP)))
    a("s_add_u32 %s, %s, %d" % (s(S_OOFF), s(S_OOFF), WS_OF))
    attn_reset(a, NQ)
    a("s_mov_b32 %s, 0" % s(S_T))
    a("s_mov_b32 %s, 0" % s(S_SLOT))
    loop = a.newlabel("att")
    rl = [(a.newlabel("rare"), a.newlabel("rret")) for n in range(NQ)]
    a.label(loop)
    a("s_barrier")
    attn_tick_compute(a, NQ, cfg, rl)
    a("s_mov_b64 %s, 0" % s(S_FIRST, 2))
    a("s_mov_b32 %s, 0" % s(S_FLOOR))
    a("s_add_u32 %s, %s, %d" % (s(S_SLOT), s(S_SLOT), SLOT))
    a("s_cmp_eq_u32 %s, %d" % (s(S_SLOT), NSLOT * SLOT))
    a("s_cselect_b32 %s, 0, %s" % (s(S_SLOT), s(S_SLOT)))
    a("s_add_u32 %s, %s, 1" % (s(S_T), s(S_T)))
    a("s_and_b32 %s, %s, 15" % (s(S_TMP), s(S_T)))
    a("s_cmp_lg_u32 %s, 0" % s(S_TMP))
    a("s_cbranch_scc1 %s" % loop)
    a.check_backedge(loop)
    attn_epilogue(a, NQ, cfg)
    done = a.newlabel("adone")
    a("s_cmp_eq_u32 %s, 32" % s(S_T))
    a("s_cbranch_scc1 %s" % done)
    a("s_add_u32 %s, %s, %d" % (s(S_OOFF), s(S_OOFF), 40 * 1024))
    a("v_lshlrev_b32 v2, 4, v%d" % lane)
    a("s_lshl_b32 %s, %s, 12" % (s(S_TMP), s(S_N0)))
    a("s_add_u32 %s, %s, %d" % (s(S_TMP), s(S_TMP), XB))
    a("v_add_u32 v2, %s, v2" % s(S_TMP))
    for n in range(NQ):
        for t in range(4):
            a("ds_read_b128 %s, v2 offset:%d" % (v(Qreg(n, t), 4), (n * 4 + t) * 1024))
    attn_reset(a, NQ)
    a.waitlds(0)
    a.nop(2)
    a("s_branch %s" % loop)
    for n in range(NQ):
        rare_path(a, n, rl[n])
    a.label(done)

def g_wave(a, NQ, cfg):
    lane = V_LANE
    a("v_lshlrev_b32 v2, 4, v%d" % lane)
    a("s_lshl_b32 %s, %s, 12" % (s(S_TMP), s(S_N0)))
    a("s_add_u32 %s, %s, %d" % (s(S_TMP), s(S_TMP), XB))
    a("v_add_u32 v2, %s, v2" % s(S_TMP))
    for n in range(NQ):
        for t in range(4):
            a("ds_write_b128 v2, %s offset:%d" % (v(Qreg(n, t), 4), (n * 4 + t) * 1024))
    a.waitlds(0)

def kv_dma_setup(a, R):
    lane = V_LANE
    a("v_lshrrev_b32 v2, 4, v%d" % lane)
    a("v_and_b32 v3, 15, v%d" % lane)
    a("s_and_b32 %s, %s, 1" % (s(S_TMP), s(S_GI)))
    a("s_lshl_b32 %s, %s, 3" % (s(S_TMP), s(S_TMP)))
    a("v_add_u32 v4, %s, v2" % s(S_TMP))
    a("v_xor_b32 v4, v4, v3")
    a("v_lshlrev_b32 v4, 4, v4")
    a("v_lshlrev_b32 v5, 8, v2")
    a("v_add_u32 v4, v4, v5")
    a("s_lshl_b32 %s, %s, 11" % (s(S_TMP), s(S_GI)))
    a("v_add_u32 v%d, %s, v4" % (R, s(S_TMP)))
    a("v_xor_b32 v%d, 64, v%d" % (R + 1, R))
    a("v_lshlrev_b32 v4, 1, v2")
    a("v_xor_b32 v4, v4, v3")
    a("v_lshlrev_b32 v4, 4, v4")
    a("v_add_u32 v4, v4, v5")
    a("v_add_u32 v%d, %s, v4" % (R + 2, s(S_TMP)))
    a("v_xor_b32 v%d, 128, v%d" % (R + 3, R + 2))

def kv_issue(a, R, cfg):
    fl = cfg.kvflags
    a("s_lshl_b32 %s, %s, 11" % (s(S_TMP), s(S_GI)))
    a("s_add_u32 %s, %s, %s" % (s(S_TMP), s(S_TMP), s(S_ISLOT)))
    a("s_mov_b32 m0, %s" % s(S_TMP))
    a("s_add_u32 %s, %s, 8192" % (s(S_TMP), s(S_TMP)))
    a("buffer_load_dwordx4 v%d, %s, %s offen %s lds" % (R, s(SRD_K, 4), s(S_IT), fl))
    a("buffer_load_dwordx4 v%d, %s, %s offen offset:1024 %s lds" % (R + 1, s(SRD_K, 4), s(S_IT), fl))
    a("s_mov_b32 m0, %s" % s(S_TMP))
    a("s_nop 0")
    a("buffer_load_dwordx4 v%d, %s, %s offen %s lds" % (R + 2, s(SRD_V, 4), s(S_IT), fl))
    a("buffer_load_dwordx4 v%d, %s, %s offen offset:1024 %s lds" % (R + 3, s(SRD_V, 4), s(S_IT), fl))
    a("s_add_u32 %s, %s, 8192" % (s(S_IT), s(S_IT)))
    a("s_add_u32 %s, %s, %d" % (s(S_ISLOT), s(S_ISLOT), SLOT))
    a("s_cmp_eq_u32 %s, %d" % (s(S_ISLOT), NSLOT * SLOT))
    a("s_cselect_b32 %s, 0, %s" % (s(S_ISLOT), s(S_ISLOT)))

def write_stamps(a, cfg, n):
    if not cfg.stamps: return
    a("s_waitcnt lgkmcnt(0)")
    lab = a.newlabel("st")
    a("v_cmp_eq_u32 vcc, 0, v%d" % V_LANE)
    a("s_and_saveexec_b64 %s, vcc" % s(S_EXEC, 2))
    a("s_cbranch_execz %s" % lab)
    a("s_lshl_b32 %s, s2, 3" % s(S_TMP))
    a("s_add_u32 %s, %s, %s" % (s(S_TMP), s(S_TMP), s(S_W)))
    a("s_lshl_b32 %s, %s, 6" % (s(S_TMP), s(S_TMP)))
    a("s_add_u32 %s, %s, %d" % (s(S_TMP), s(S_TMP), WS_ST))
    a("v_mov_b32 v2, 0")
    for i in range(n):
        a("v_mov_b32 v4, %s" % s(S_ST0 + 2 * i))
        a("v_mov_b32 v5, %s" % s(S_ST0 + 2 * i + 1))
        a("buffer_store_dwordx2 v[4:5], v2, %s, %s offen offset:%d" % (s(SRD_WS, 4), s(S_TMP), 8 * i))
        a("s_nop 1")
    a.label(lab)
    a("s_mov_b64 exec, %s" % s(S_EXEC, 2)) if False else None

def srd(a, R, ptr, size, add=None):
    if add is None:
        a("s_mov_b32 %s, %s" % (s(R), s(ptr)))
        a("s_mov_b32 %s, %s" % (s(R + 1), s(ptr + 1)))
    else:
        a("s_add_u32 %s, %s, %s" % (s(R), s(ptr), s(add)))
        a("s_addc_u32 %s, %s, 0" % (s(R + 1), s(ptr + 1)))
    a("s_mov_b32 %s, %d" % (s(R + 2), size))
    a("s_mov_b32 %s, 0x20000" % s(R + 3))

def kernel1(cfg):
    a = Asm()
    end = "L_k1_end"
    a("s_cmp_ge_u32 s2, 256")
    a("s_cbranch_scc1 %s" % end)
    stamp(a, 0, cfg)
    common_ids(a)
    a("s_mul_i32 s5, %s, 40" % s(S_BR))
    a("s_add_u32 s6, s0, s5")
    a("s_addc_u32 s7, s1, 0")
    a("s_load_dwordx4 s[80:83], s[6:7], 0")
    a("s_load_dwordx4 s[84:87], s[6:7], 16")
    a("s_load_dwordx2 s[88:89], s[0:1], 96")
    a("v_lshrrev_b32 v2, 6, v0")
    a("v_and_b32 v%d, 63, v0" % V_LANE)
    a("v_readfirstlane_b32 %s, v2" % s(S_W))
    a("s_mov_b32 %s, 0xffff0000" % s(S_ODD))
    a("s_mov_b32 %s, 0xffff0000" % s(S_ODD + 1))
    a("s_and_b32 %s, %s, 3" % (s(S_GI), s(S_W)))
    a("s_mov_b32 %s, 0x30868630" % s(S_TMP))
    a("s_lshl_b32 %s, %s, 2" % (s(S_TMP2), s(S_W)))
    a("s_lshr_b32 %s, %s, %s" % (s(S_TMP), s(S_TMP), s(S_TMP2)))
    a("s_and_b32 %s, %s, 15" % (s(S_N0), s(S_TMP)))
    a("s_mul_i32 %s, %s, 184320" % (s(S_TMP), s(S_B)))
    a("s_lshl_b32 %s, %s, 5" % (s(S_TMP2), s(S_B)))
    a("s_lshl_b32 %s, %s, 1" % (s(S_TMP3), s(S_P)))
    a("s_add_u32 %s, %s, %s" % (s(S_TMP2), s(S_TMP2), s(S_TMP3)))
    a("s_lshl_b32 %s, %s, 17" % (s(S_TMP2), s(S_TMP2)))
    a("s_waitcnt lgkmcnt(0)")
    srd(a, SRD_X, 80, 184320, S_TMP)
    srd(a, SRD_K, 82, 262144, S_TMP2)
    srd(a, SRD_V, 84, 262144, S_TMP2)
    srd(a, SRD_WQ, 86, 4718592)
    srd(a, SRD_WS, 88, 268435456)
    R = 32
    kv_dma_setup(a, R)
    a("s_mov_b32 %s, 0" % s(S_IT))
    a("s_mov_b32 %s, 0" % s(S_ISLOT))
    l0 = a.newlabel("nokv")
    a("s_cmp_ge_u32 %s, 4" % s(S_W))
    a("s_cbranch_scc1 %s" % l0)
    for i in range(3): kv_issue(a, R, cfg)
    a.label(l0)
    a("s_mov_b32 %s, %d" % (s(S_IT), 3 * 8192))
    a("s_mov_b32 %s, %d" % (s(S_ISLOT), 3 * SLOT))
    a("s_add_u32 %s, %s, 2" % (s(S_TMP), s(S_W)))
    a("s_and_b32 %s, %s, 7" % (s(S_TMP), s(S_TMP)))
    a("s_cmp_lt_u32 %s, 4" % s(S_TMP))
    a("s_cbranch_scc0 L_nq2")
    for NQ in (3, 2):
        if NQ == 2: a.label("L_nq2")
        qproj(a, NQ, cfg)
        stamp(a, 1, cfg)
        a("s_waitcnt vmcnt(0)")
        a("s_barrier")
        lg = a.newlabel("gw")
        a("s_cmp_ge_u32 %s, 4" % s(S_W))
        a("s_cbranch_scc1 %s" % lg)
        attn_wave(a, NQ, cfg)
        a("s_branch L_k1_fin")
        a.label(lg)
        for i in range(3): kv_issue(a, R, cfg)
        g_wave(a, NQ, cfg)
        a("s_branch L_gloop")
    a.label("L_gloop")
    a("s_mov_b32 %s, 0" % s(S_T))
    a.label("L_gl")
    a("s_waitcnt vmcnt(20)")
    a("s_barrier")
    kv_issue(a, R, cfg)
    a("s_add_u32 %s, %s, 1" % (s(S_T), s(S_T)))
    a("s_cmp_lt_u32 %s, 32" % s(S_T))
    a("s_cbranch_scc1 L_gl")
    a.label("L_k1_fin")
    stamp(a, 2, cfg)
    write_stamps(a, cfg, 3)
    a.label(end)
    a("s_endpgm")
    return a

def kd(name, vgpr=256, sgpr=102):
    return """.amdhsa_kernel %s
  .amdhsa_next_free_vgpr %d
  .amdhsa_next_free_sgpr %d
  .amdhsa_accum_offset %d
  .amdhsa_group_segment_fixed_size 0
  .amdhsa_kernarg_size 104
  .amdhsa_user_sgpr_count 2
  .amdhsa_user_sgpr_kernarg_segment_ptr 1
  .amdhsa_system_sgpr_workgroup_id_x 1
.end_amdhsa_kernel
""" % (name, vgpr, sgpr, (vgpr + 3) // 4 * 4)

def assemble(kernels, fn):
    t = HDR
    for (name, a, g, b, lds, vg) in kernels:
        t += "; @launch kernel=%s grid=(%d,1,1) block=(%d,1,1) lds=%d\n" % (name, g, b, lds)
    t += '.amdgcn_target "amdgcn-amd-amdhsa--gfx950"\n.text\n'
    seen = set()
    for (name, a, g, b, lds, vg) in kernels:
        if name in seen: continue
        seen.add(name)
        t += ".globl %s\n.p2align 8\n.type %s,@function\n%s:\n" % (name, name, name)
        t += a.text()
    t += '.section .rodata,"a"\n'
    seen = set()
    for (name, a, g, b, lds, vg) in kernels:
        if name in seen: continue
        seen.add(name)
        t += ".p2align 6\n" + kd(name, vg)
    open(fn, "w").write(t)

WO_SLOT = 9216
def kernel2(cfg):
    a = Asm()
    end = "L_k2_end"
    a("s_cmp_ge_u32 s2, 256")
    a("s_cbranch_scc1 %s" % end)
    common_ids(a)
    a("s_mul_i32 s5, %s, 40" % s(S_BR))
    a("s_add_u32 s6, s0, s5")
    a("s_addc_u32 s7, s1, 0")
    a("s_load_dwordx2 s[80:81], s[6:7], 32")
    a("s_load_dwordx2 s[88:89], s[0:1], 96")
    a("v_lshrrev_b32 v2, 6, v0")
    a("v_and_b32 v%d, 63, v0" % V_LANE)
    a("v_readfirstlane_b32 %s, v2" % s(S_W))
    a("s_mov_b32 %s, 0x8630" % s(S_TMP))
    a("s_lshl_b32 %s, %s, 2" % (s(S_TMP2), s(S_W)))
    a("s_lshr_b32 %s, %s, %s" % (s(S_TMP), s(S_TMP), s(S_TMP2)))
    a("s_and_b32 %s, %s, 15" % (s(S_N0), s(S_TMP)))
    a("s_waitcnt lgkmcnt(0)")
    srd(a, SRD_WO, 80, 4718592)
    srd(a, SRD_WS, 88, 268435456)
    a("s_cmp_lt_u32 %s, 2" % s(S_W))
    a("s_cbranch_scc0 L_k2_nq2")
    for NQ in (3, 2):
        if NQ == 2: a.label("L_k2_nq2")
        oproj(a, NQ, cfg)
        a("s_branch %s" % end)
    a.label(end)
    a("s_endpgm")
    return a

def oproj(a, NQ, cfg):
    lane = V_LANE
    ACC = 100
    OF = [40, 52, 64]
    WF = 76
    VD = 20
    VR = 24
    VO = 25
    a("s_lshl_b32 %s, %s, 1" % (s(S_TMP), s(S_W)))
    a("s_add_u32 %s, %s, 1" % (s(S_TMP2), s(S_TMP)))
    a("s_cmp_eq_u32 %s, 0" % s(S_W))
    a("s_cselect_b32 %s, 0, %s" % (s(S_GI), s(S_TMP2)))
    a("s_mul_i32 %s, %s, 288" % (s(S_TMP3), s(S_J4)))
    for i in range(3):
        a("s_add_u32 %s, %s, %d" % (s(S_TMP), s(S_GI), i))
        a("s_lshl_b32 %s, %s, 6" % (s(S_TMP), s(S_TMP)))
        a("v_add_u32 v2, %s, v%d" % (s(S_TMP), lane))
        a("s_mov_b32 %s, 3641" % s(S_TMP2))
        a("v_mul_u32_u24 v3, %s, v2" % s(S_TMP2))
        a("v_lshrrev_b32 v3, 16, v3")
        a("v_mul_u32_u24 v4, 18, v3")
        a("v_sub_u32 v4, v2, v4")
        a("v_mul_u32_u24 v3, 1152, v3")
        a("v_lshlrev_b32 v4, 4, v4")
        a("v_add_u32 v3, v3, v4")
        a("v_add_u32 v%d, %s, v3" % (VD + i, s(S_TMP3)))
    a("v_lshrrev_b32 v2, 4, v%d" % lane)
    a("v_bfe_u32 v3, v%d, 2, 2" % lane)
    a("v_lshlrev_b32 v2, 2, v2")
    a("v_add_u32 v2, v2, v3")
    a("v_mul_u32_u24 v2, 288, v2")
    a("v_and_b32 v3, 3, v%d" % lane)
    a("v_lshlrev_b32 v3, 3, v3")
    a("v_add_u32 v%d, v2, v3" % VR)
    a("v_lshlrev_b32 v%d, 4, v%d" % (VO, lane))
    for i in range(NQ * 36): a("v_mov_b32 v%d, 0" % (ACC + i))
    S_WS = 72; S_OS = 73; S_WL = 74; S_RS = 75
    a("s_mul_i32 %s, %s, 1179648" % (s(S_WS), s(S_XH)))
    a("s_lshl_b32 %s, %s, 3" % (s(S_TMP), s(S_BR)))
    a("s_add_u32 %s, %s, %s" % (s(S_TMP), s(S_TMP), s(S_B)))
    a("s_lshl_b32 %s, %s, 5" % (s(S_TMP), s(S_TMP)))
    a("s_lshl_b32 %s, %s, 3" % (s(S_TMP2), s(S_XH)))
    a("s_add_u32 %s, %s, %s" % (s(S_TMP), s(S_TMP), s(S_TMP2)))
    a("s_mul_i32 %s, %s, 40" % (s(S_TMP), s(S_TMP)))
    a("s_add_u32 %s, %s, %s" % (s(S_TMP), s(S_TMP), s(S_N0)))
    a("s_lshl_b32 %s, %s, 10" % (s(S_OS), s(S_TMP)))
    a("s_add_u32 %s, %s, %d" % (s(S_OS), s(S_OS), WS_OF))
    a("s_mov_b32 %s, 0" % s(S_WL))
    ndma = 3 if NQ == 3 else 2
    def issue(stage):
        a("s_lshl_b32 %s, %s, 10" % (s(S_TMP), s(S_GI)))
        a("s_add_u32 %s, %s, %s" % (s(S_TMP), s(S_TMP), s(S_WL)))
        for i in range(2):
            a("s_add_u32 %s, %s, %d" % (s(S_TMP2), s(S_TMP), i * 1024))
            a("s_mov_b32 m0, %s" % s(S_TMP2))
            a("s_nop 0")
            a("buffer_load_dwordx4 v%d, %s, %s offen lds" % (VD + i, s(SRD_WO, 4), s(S_WS)))
        if NQ == 3:
            a("s_add_u32 %s, %s, %d" % (s(S_TMP2), s(S_TMP), 2048))
            a("s_mov_b32 m0, %s" % s(S_TMP2))
            a("s_nop 0")
            a("buffer_load_dwordx4 v%d, %s, %s offen lds" % (VD + 2, s(SRD_WO, 4), s(S_WS)))
        for n in range(NQ):
            a("s_add_u32 %s, %s, %d" % (s(S_TMP2), s(S_OS), n * 1024))
            a("buffer_load_dwordx4 %s, v%d, %s, %s offen" % (v(OF[stage] + 4 * n, 4), VO, s(SRD_WS, 4), s(S_TMP2)))
        a("s_add_u32 %s, %s, 36864" % (s(S_WS), s(S_WS)))
        a("s_add_u32 %s, %s, 10240" % (s(S_OS), s(S_OS)))
        a("s_add_u32 %s, %s, %d" % (s(S_WL), s(S_WL), WO_SLOT))
        a("s_cmp_eq_u32 %s, %d" % (s(S_WL), 3 * WO_SLOT))
        a("s_cselect_b32 %s, 0, %s" % (s(S_WL), s(S_WL)))
    per = ndma + NQ
    issue(0); issue(1)
    a("s_mov_b32 %s, 0" % s(S_T))
    a("s_mov_b32 %s, 0" % s(S_RS))
    loop = a.newlabel("op")
    a.label(loop)
    for st in range(3):
        a("s_waitcnt vmcnt(%d)" % per)
        a("s_barrier")
        lsk = a.newlabel("op_skip")
        issue((st + 2) % 3)
        a("v_add_u32 v2, %s, v%d" % (s(S_RS), VR))
        for grp in range(2):
            nus = range(0, 5) if grp == 0 else range(5, 9)
            for j, nu in enumerate(nus):
                a("ds_read_b64_tr_b16 %s, v2 offset:%d" % (v(WF + 4 * j, 2), nu * 32))
                a("ds_read_b64_tr_b16 %s, v2 offset:%d" % (v(WF + 4 * j + 2, 2), nu * 32 + 16 * 288))
            for j, nu in enumerate(nus):
                for n in range(NQ):
                    d = ACC + (n * 9 + nu) * 4
                    a("v_mfma_f32_16x16x32_bf16 %s, %s, %s, %s" % (v(d, 4), v(WF + 4 * j, 4), v(OF[st] + 4 * n, 4), v(d, 4)))
        a("s_add_u32 %s, %s, %d" % (s(S_RS), s(S_RS), WO_SLOT))
        a("s_cmp_eq_u32 %s, %d" % (s(S_RS), 3 * WO_SLOT))
        a("s_cselect_b32 %s, 0, %s" % (s(S_RS), s(S_RS)))
        a("s_add_u32 %s, %s, 1" % (s(S_T), s(S_T)))
        if st < 2:
            a("s_cmp_eq_u32 %s, 32" % s(S_T))
            a("s_cbranch_scc1 %s" % (loop + "_done"))
    a("s_cmp_lt_u32 %s, 32" % s(S_T))
    a("s_cbranch_scc1 %s" % loop)
    a.label(loop + "_done")
    a("s_waitcnt vmcnt(0)")
    a.nop(8)
    a("s_lshl_b32 %s, %s, 3" % (s(S_TMP), s(S_BR)))
    a("s_add_u32 %s, %s, %s" % (s(S_TMP), s(S_TMP), s(S_B)))
    a("s_lshl_b32 %s, %s, 2" % (s(S_TMP), s(S_TMP)))
    a("s_add_u32 %s, %s, %s" % (s(S_TMP), s(S_TMP), s(S_XH)))
    a("s_lshl_b32 %s, %s, 2" % (s(S_TMP), s(S_TMP)))
    a("s_add_u32 %s, %s, %s" % (s(S_TMP), s(S_TMP), s(S_J4)))
    a("s_mul_i32 %s, %s, 10" % (s(S_TMP), s(S_TMP)))
    a("s_add_u32 %s, %s, %s" % (s(S_TMP), s(S_TMP), s(S_N0)))
    a("s_mul_i32 %s, %s, 9216" % (s(S_TMP), s(S_TMP)))
    a("s_add_u32 %s, %s, %d" % (s(S_TMP), s(S_TMP), WS_PT))
    for n in range(NQ):
        for nu in range(9):
            a("s_add_u32 %s, %s, %d" % (s(S_TMP2), s(S_TMP), (n * 9 + nu) * 1024))
            a("buffer_store_dwordx4 %s, v%d, %s, %s offen" % (v(ACC + (n * 9 + nu) * 4, 4), VO, s(SRD_WS, 4), s(S_TMP2)))

def kernel3(cfg):
    a = Asm()
    end = "L_k3_end"
    a("s_cmp_ge_u32 s2, 1440")
    a("s_cbranch_scc1 %s" % end)
    a("s_load_dwordx2 s[80:81], s[0:1], 80")
    a("s_load_dwordx2 s[88:89], s[0:1], 96")
    a("v_lshrrev_b32 v2, 6, v0")
    a("v_and_b32 v%d, 63, v0" % V_LANE)
    a("v_readfirstlane_b32 %s, v2" % s(S_W))
    a("s_lshl_b32 s3, s2, 2")
    a("s_add_u32 s3, s3, %s" % s(S_W))
    a("s_mul_hi_u32 s4, s3, %d" % ((1 << 32) // 90 + 1))
    a("s_mul_i32 s5, s4, 90")
    a("s_sub_u32 s5, s3, s5")
    a("s_mul_hi_u32 s6, s5, %d" % ((1 << 32) // 9 + 1))
    a("s_mul_i32 s7, s6, 9")
    a("s_sub_u32 s7, s5, s7")
    a("s_and_b32 s8, s4, 3")
    a("s_lshr_b32 s9, s4, 2")
    a("s_lshl_b32 s10, s9, 4")
    a("s_add_u32 s10, s10, s8")
    a("s_mul_i32 s10, s10, 90")
    a("s_add_u32 s10, s10, s5")
    a("s_lshl_b32 s10, s10, 10")
    a("s_add_u32 s10, s10, %d" % WS_PT)
    a("s_waitcnt lgkmcnt(0)")
    srd(a, SRD_WS, 88, 268435456)
    srd(a, SRD_WO, 80, 8 * 160 * 1152 * 2)
    a("v_lshlrev_b32 v2, 4, v%d" % V_LANE)
    for xh in range(4):
        a("s_add_u32 s11, s10, %d" % (xh * 4 * 90 * 1024))
        a("buffer_load_dwordx4 %s, v2, %s, s11 offen" % (v(4 + 4 * xh, 4), s(SRD_WS, 4)))
    a("s_and_b32 s12, s9, 7")
    a("s_lshr_b32 s13, s9, 3")
    a("s_mul_i32 s12, s12, 160")
    a("s_lshl_b32 s14, s6, 4")
    a("s_add_u32 s12, s12, s14")
    a("s_mul_i32 s12, s12, 2304")
    a("s_mul_i32 s13, s13, 1152")
    a("s_add_u32 s12, s12, s13")
    a("s_mul_i32 s13, s8, 288")
    a("s_add_u32 s12, s12, s13")
    a("s_lshl_b32 s13, s7, 5")
    a("s_add_u32 s12, s12, s13")
    a("v_and_b32 v3, 15, v%d" % V_LANE)
    a("v_mul_u32_u24 v3, 2304, v3")
    a("v_lshrrev_b32 v20, 4, v%d" % V_LANE)
    a("v_lshlrev_b32 v20, 3, v20")
    a("v_add_u32 v3, v3, v20")
    a("s_waitcnt vmcnt(0)")
    for i in range(4):
        a("v_add_f32 v%d, v%d, v%d" % (4 + i, 4 + i, 8 + i))
        a("v_add_f32 v%d, v%d, v%d" % (12 + i, 12 + i, 16 + i))
    for i in range(4):
        a("v_add_f32 v%d, v%d, v%d" % (4 + i, 4 + i, 12 + i))
    a("v_cvt_pk_bf16_f32 v4, v4, v5")
    a("v_cvt_pk_bf16_f32 v5, v6, v7")
    a("buffer_store_dwordx2 v[4:5], v3, %s, s12 offen" % s(SRD_WO, 4))
    a.label(end)
    a("s_endpgm")
    return a

if __name__ == "__main__":
    cfg = Cfg()
    fn = sys.argv[1]
    for kv in sys.argv[2:]:
        k, val = kv.split("=", 1)
        cur = getattr(cfg, k)
        if isinstance(cur, bool): val = val in ("1", "True", "true")
        elif isinstance(cur, float): val = float(val)
        elif isinstance(cur, int): val = int(val)
        setattr(cfg, k, val)
    k1 = kernel1(cfg); k2 = kernel2(cfg); k3 = kernel3(cfg)
    assemble([("attn_kernel", k1, 256, 512, LDS_TOTAL, 256),
              ("oproj_kernel", k2, 256, 256, 3 * WO_SLOT, 208),
              ("reduce_kernel", k3, 1440, 256, 0, 32)], fn)
    print("nops inserted:", k1.nnop, k2.nnop, k3.nnop)
```

```python
import sys, math, struct
sys.path.insert(0, "dev")
from emit import *

HDR = open("concat_heads__mha_block_cached__gqa_block_cached__near_ridge.s.ref").read().split("; Override launch")[0]

class Cfg:
    kvflags = "nt"
    stflags = "sc1"
    ldflags = "sc1"
    ptflags = ""
    stamps = False
    probe = ""
    nst = 3
    thr = 16384.0
    fuse_o = True
    pfflags = ""
    kvpf = 2
    kvpfflags = "nt"
    wflags = ""
    wopf_tick = 14
    trace = 0
    opf = True
    fuse2 = True
    kv0 = 7
    kv1 = 8

NSLOT = 5
SLOT = 32768
XB = 65536
WB = 106496
LDS_TOTAL = 163840
OR_B = 0
WR_B = 81920
WO_SLOT = 9216
WS_OF = 0
WS_PT = 32 << 20
WS_ST = 96 << 20
WS_P2 = 64 << 20
WS_FL = 112 << 20
QSCALE = 1.4426950408889634 / math.sqrt(128.0)

def f32(x): return "0x%08x" % struct.unpack("<I", struct.pack("<f", x))[0]

SRD_X, SRD_WQ, SRD_K, SRD_V, SRD_WO, SRD_WS = 8, 12, 16, 20, 24, 28
S_W = 33; S_BR = 34; S_B = 35; S_P = 36; S_XH = 37; S_J4 = 38; S_N0 = 39; S_GI = 40
S_T = 41; S_SLOT = 42; S_ISLOT = 43; S_IT = 44
S_TMP = 45; S_TMP2 = 46; S_TMP3 = 47
S_FIRST = 48; S_FLOOR = 50; S_THR = 51; S_ODD = 52
S_XD = 54; S_WD = 55; S_J = 56; S_IDX = 57; S_OOFF = 58; S_GRP = 59
S_EXEC = 70
S_FLG = 49
S_G2 = 48
S_DBG = 4
STAMP_REGS = [90, 92, 94, 96, 98, 100, 80, 82, 84, 86, 88, 60, 62, 64, 66, 68]

V_LANE = 1
V_DK = 8; V_DV = 9
V_KB = 10; V_VB = 11; V_L = 12; V_TS = 15; V_TMP4 = 16; V_A = 20
V_NEGM = 28; V_VF = 40; V_KF = 56; V_S = 88; V_Q = 112; V_O = 160
def Oreg(n, db): return V_O + n * 32 + db * 4
def Qreg(n, t): return V_Q + n * 16 + t * 4
def Sreg(n, k): return V_S + n * 8 + k * 4
def Kreg(k, t): return V_KF + (k * 4 + t) * 4
def NM(n): return V_NEGM + 4 * n
MF = "v_mfma_f32_16x16x32_bf16"

def stamp(a, idx, cfg):
    if cfg.stamps: a("s_memrealtime %s" % s(STAMP_REGS[idx], 2))
def probe(a, idx, cfg, name, cond=None):
    if cfg.probe == "rt" and name == "tl":
        a("s_memrealtime %s" % s(STAMP_REGS[idx], 2)); return
    if cfg.probe != name: return
    if cond:
        lab = a.newlabel("pr")
        a("s_cmp_lg_u32 %s, %d" % (s(cond[0]), cond[1]))
        a("s_cbranch_scc1 %s" % lab)
        a("s_memtime %s" % s(STAMP_REGS[idx], 2))
        a.label(lab, keep=True)
    else:
        a("s_memtime %s" % s(STAMP_REGS[idx], 2))

V_TR = 19
def trace(a, cfg, base, sreg=None, shift=0, kind=1):
    if cfg.trace != kind: return
    a("s_memtime s[80:81]")
    a("s_waitcnt lgkmcnt(0)")
    if sreg is None:
        a("v_writelane_b32 v%d, s80, %d" % (V_TR, base))
    else:
        a("s_lshl_b32 s82, %s, %d" % (s(sreg), shift))
        a("s_add_u32 m0, s82, %d" % base)
        a("s_nop 3")
        a("v_writelane_b32 v%d, s80, m0" % V_TR)

def common_ids(a):
    a("s_and_b32 s3, s2, 7")
    a("s_lshr_b32 %s, s3, 2" % s(S_BR))
    a("s_and_b32 %s, s3, 3" % s(S_XH))
    a("s_lshr_b32 s3, s2, 3")
    a("s_and_b32 %s, s3, 7" % s(S_B))
    a("s_lshr_b32 %s, s3, 3" % s(S_J4))
    a("s_lshl_b32 %s, %s, 2" % (s(S_P), s(S_XH)))
    a("s_add_u32 %s, %s, %s" % (s(S_P), s(S_P), s(S_J4)))

def srd(a, R, ptr, size, add=None):
    if add is None:
        a("s_mov_b32 %s, %s" % (s(R), s(ptr)))
        a("s_mov_b32 %s, %s" % (s(R + 1), s(ptr + 1)))
    else:
        a("s_add_u32 %s, %s, %s" % (s(R), s(ptr), s(add)))
        a("s_addc_u32 %s, %s, 0" % (s(R + 1), s(ptr + 1)))
    a("s_mov_b32 %s, %d" % (s(R + 2), size))
    a("s_mov_b32 %s, 0x20000" % s(R + 3))

def interleave(a, ms, others, start=0, every=1):
    n = len(ms); k = len(others)
    pos = {}
    for i in range(k):
        p = start + int((i + 0.5) * (n - start) / max(k, 1))
        pos.setdefault(min(p, n - 1), []).append(others[i])
    for i, m in enumerate(ms):
        a(m)
        for grp in pos.get(i, []):
            for o in grp: a(o)

def kv_voff_setup(a):
    lane = V_LANE
    a("v_lshrrev_b32 v2, 4, v%d" % lane)
    a("v_and_b32 v3, 15, v%d" % lane)
    a("s_and_b32 %s, %s, 1" % (s(S_TMP), s(S_IDX)))
    a("s_lshl_b32 %s, %s, 3" % (s(S_TMP), s(S_TMP)))
    a("v_add_u32 v4, %s, v2" % s(S_TMP))
    a("v_xor_b32 v4, v4, v3")
    a("v_lshlrev_b32 v4, 4, v4")
    a("v_lshlrev_b32 v5, 8, v2")
    a("v_add_u32 v%d, v4, v5" % V_DK)
    a("v_lshlrev_b32 v4, 1, v2")
    a("v_xor_b32 v4, v4, v3")
    a("v_lshlrev_b32 v4, 4, v4")
    a("v_add_u32 v%d, v4, v5" % V_DV)

def kv_issue_ops(cfg, idxoff_s, t1, t2):
    fl = cfg.kvflags
    g = []
    g.append(["s_add_u32 %s, %s, %s" % (s(S_TMP), s(S_ISLOT), idxoff_s[1]),
              "s_add_u32 %s, %s, %s" % (s(S_TMP2), s(S_IT), idxoff_s[0]),
              "s_mov_b32 m0, %s" % s(S_TMP),
              "v_xor_b32 v%d, 64, v%d" % (t1, V_DK),
              "buffer_load_dwordx4 v%d, %s, %s offen %s lds" % (V_DK, s(SRD_K, 4), s(S_TMP2), fl)])
    g.append(["buffer_load_dwordx4 v%d, %s, %s offen offset:1024 %s lds" % (t1, s(SRD_K, 4), s(S_TMP2), fl)])
    g.append(["s_add_u32 %s, %s, 8192" % (s(S_TMP), s(S_TMP)),
              "s_mov_b32 m0, %s" % s(S_TMP),
              "v_xor_b32 v%d, 128, v%d" % (t2, V_DV),
              "buffer_load_dwordx4 v%d, %s, %s offen %s lds" % (V_DV, s(SRD_V, 4), s(S_TMP2), fl)])
    g.append(["buffer_load_dwordx4 v%d, %s, %s offen offset:1024 %s lds" % (t2, s(SRD_V, 4), s(S_TMP2), fl)])
    return g

S_KVS = 72; S_KVL = 73
def kv_advance(a):
    a("s_add_u32 %s, %s, 8192" % (s(S_IT), s(S_IT)))
    a("s_add_u32 %s, %s, %d" % (s(S_ISLOT), s(S_ISLOT), SLOT))
    a("s_cmp_eq_u32 %s, %d" % (s(S_ISLOT), NSLOT * SLOT))
    a("s_cselect_b32 %s, 0, %s" % (s(S_ISLOT), s(S_ISLOT)))

def qproj(a, NQ, cfg):
    WF = [56, 112]; XF = [88, 100]
    VWA = 20; VX0, VX1 = 10, 11
    VDW = [28, 29, 30, 31]; VDX = [32, 33, 34, 35, 36]
    lane = V_LANE
    dma = (NQ == 2)
    S_WQS = 74; S_WQL = 75; S_XS = 76; S_XL = 77
    S_KW = 78; S_SW = 79; S_CX = 60; S_SX = 61; S_WR = 62
    a("v_lshrrev_b32 v2, 4, v%d" % lane)
    if dma:
        a("s_sub_u32 %s, %s, 2" % (s(S_GI), s(S_W)))
        a("v_and_b32 v6, 1, v2")
        a("v_lshrrev_b32 v7, 1, v2")
        a("v_lshlrev_b32 v7, 2, v7")
        a("v_or_b32 v6, v6, v7")
        a("v_and_b32 v7, 15, v%d" % lane)
        a("v_xor_b32 v6, v6, v7")
        a("v_lshlrev_b32 v6, 4, v6")
        a("v_lshlrev_b32 v7, 13, v2")
        a("v_add_u32 v%d, v6, v7" % VDW[0])
        a("v_add_u32 v%d, %d, v%d" % (VDW[1], 32768 - 1024, VDW[0]))
        a("v_xor_b32 v6, 128, v%d" % VDW[0])
        a("v_add_u32 v%d, %d, v6" % (VDW[2], 2 * (32768 - 1024)))
        a("v_add_u32 v%d, %d, v6" % (VDW[3], 3 * (32768 - 1024)))
        a("v_lshrrev_b32 v6, 3, v%d" % lane)
        a("v_mul_u32_u24 v6, 1152, v6")
        a("v_and_b32 v7, 7, v%d" % lane)
        a("v_xor_b32 v7, v7, v2")
        a("v_lshlrev_b32 v7, 4, v7")
        a("s_and_b32 %s, %s, 1" % (s(S_TMP), s(S_GI)))
        a("s_lshl_b32 %s, %s, 6" % (s(S_TMP), s(S_TMP)))
        a("v_xor_b32 v7, %s, v7" % s(S_TMP))
        a("v_xor_b32 v5, 64, v7")
        for i in range(5):
            a("v_add_u32 v%d, v6, v%d" % (VDX[i], 7 if i % 2 == 0 else 5))
            off = i * 9216 - (i % 4) * 1024
            if off: a("v_add_u32 v%d, %d, v%d" % (VDX[i], off, VDX[i]))
        a("s_and_b32 %s, %s, 1" % (s(S_TMP), s(S_GI)))
        a("s_lshr_b32 %s, %s, 1" % (s(S_TMP2), s(S_GI)))
        a("s_lshl_b32 %s, %s, 17" % (s(S_WQS), s(S_TMP)))
        a("s_lshl_b32 %s, %s, 1" % (s(S_TMP3), s(S_P)))
        a("s_add_u32 %s, %s, %s" % (s(S_TMP3), s(S_TMP3), s(S_TMP2)))
        a("s_lshl_b32 %s, %s, 8" % (s(S_TMP3), s(S_TMP3)))
        a("s_add_u32 %s, %s, %s" % (s(S_WQS), s(S_WQS), s(S_TMP3)))
        a("s_lshl_b32 %s, %s, 12" % (s(S_WQL), s(S_TMP)))
        a("s_lshl_b32 %s, %s, 13" % (s(S_TMP2), s(S_TMP2)))
        a("s_add_u32 %s, %s, %s" % (s(S_WQL), s(S_WQL), s(S_TMP2)))
        a("s_add_u32 %s, %s, %d" % (s(S_WQL), s(S_WQL), WB))
        a("s_mul_i32 %s, %s, %d" % (s(S_XS), s(S_GI), 5 * 9216))
        a("s_mul_i32 %s, %s, %d" % (s(S_XL), s(S_GI), 5 * 1024))
        a("s_add_u32 %s, %s, %d" % (s(S_XL), s(S_XL), XB))
    def dma_wq():
        g = [["s_add_u32 %s, %s, %s" % (s(S_TMP), s(S_KW), s(S_WQS)),
              "s_add_u32 %s, %s, %s" % (s(S_TMP2), s(S_SW), s(S_WQL)),
              "s_mov_b32 m0, %s" % s(S_TMP2),
              "s_add_u32 %s, %s, 262144" % (s(S_KW), s(S_KW)),
              "buffer_load_dwordx4 v%d, %s, %s offen %s lds" % (VDW[0], s(SRD_WQ, 4), s(S_TMP), cfg.wflags)]]
        for i in range(1, 4):
            g.append(["buffer_load_dwordx4 v%d, %s, %s offen offset:%d %s lds" % (VDW[i], s(SRD_WQ, 4), s(S_TMP), i * 1024, cfg.wflags)])
        g[-1] += ["s_add_u32 %s, %s, 16384" % (s(S_SW), s(S_SW)),
                  "s_cmp_eq_u32 %s, 49152" % s(S_SW),
                  "s_cselect_b32 %s, 0, %s" % (s(S_SW), s(S_SW))]
        return g
    def dma_x():
        g = [["s_add_u32 %s, %s, %s" % (s(S_TMP3), s(S_CX), s(S_XS)),
              "s_add_u32 %s, %s, %s" % (s(S_TMP2), s(S_SX), s(S_XL)),
              "s_mov_b32 m0, %s" % s(S_TMP2),
              "s_add_u32 %s, %s, 128" % (s(S_CX), s(S_CX)),
              "buffer_load_dwordx4 v%d, %s, %s offen %s lds" % (VDX[0], s(SRD_X, 4), s(S_TMP3), cfg.wflags)]]
        for i in range(1, 4):
            g.append(["buffer_load_dwordx4 v%d, %s, %s offen offset:%d %s lds" % (VDX[i], s(SRD_X, 4), s(S_TMP3), i * 1024, cfg.wflags)])
        g.append(["s_add_u32 %s, %s, 4096" % (s(S_TMP2), s(S_TMP2)),
                  "s_mov_b32 m0, %s" % s(S_TMP2),
                  "s_sub_u32 %s, 20480, %s" % (s(S_SX), s(S_SX)),
                  "buffer_load_dwordx4 v%d, %s, %s offen %s lds" % (VDX[4], s(SRD_X, 4), s(S_TMP3), cfg.wflags)])
        return g
    def emit(groups):
        for g in groups:
            for o in g: a(o)
    if dma:
        a("s_mov_b32 %s, 0" % s(S_KW)); a("s_mov_b32 %s, 0" % s(S_SW))
        a("s_mov_b32 %s, 0" % s(S_CX)); a("s_mov_b32 %s, 0" % s(S_SX))
        emit(dma_x()); emit(dma_wq()); emit(dma_wq())
        probe(a, 5, cfg, "su")
    else:
        a("s_add_u32 %s, %s, 2" % (s(S_GI), s(S_W)))
        a("s_and_b32 %s, %s, 3" % (s(S_GI), s(S_GI)))
        a("v_lshrrev_b32 v6, 2, v%d" % lane)
        a("v_lshlrev_b32 v6, 13, v6")
        a("v_and_b32 v7, 3, v%d" % lane)
        a("v_lshlrev_b32 v7, 7, v7")
        a("v_add_u32 v6, v6, v7")
        a("s_mul_i32 %s, %s, %d" % (s(S_TMP), s(S_B), 72 * 8192))
        a("s_lshl_b32 %s, %s, 9" % (s(S_TMP2), s(S_P)))
        a("s_add_u32 %s, %s, %s" % (s(S_TMP), s(S_TMP), s(S_TMP2)))
        a("s_lshl_b32 %s, %s, 17" % (s(S_TMP2), s(S_GI)))
        a("s_add_u32 %s, %s, %s" % (s(S_TMP2), s(S_TMP2), s(S_TMP)))
        a("buffer_load_dword v0, v6, %s, %s offen %s" % (s(SRD_WQ, 4), s(S_TMP2), cfg.pfflags))
        a("v_mov_b32 v5, 0x7ff00000")
        a("v_cmp_gt_u32 vcc, 8, v%d" % lane)
        a("v_cndmask_b32 v5, v5, v6, vcc")
        a("s_lshl_b32 %s, %s, 14" % (s(S_TMP2), s(S_GI)))
        a("s_add_u32 %s, %s, %s" % (s(S_TMP2), s(S_TMP2), s(S_TMP)))
        a("s_add_u32 %s, %s, %d" % (s(S_TMP2), s(S_TMP2), 64 * 8192))
        a("buffer_load_dword v0, v5, %s, %s offen %s" % (s(SRD_WQ, 4), s(S_TMP2), cfg.pfflags))
        a("v_lshlrev_b32 v7, 7, v%d" % lane)
        a("s_mul_i32 %s, %s, 46080" % (s(S_TMP), s(S_J4)))
        a("s_mul_i32 %s, %s, 11520" % (s(S_TMP2), s(S_GI)))
        a("s_add_u32 %s, %s, %s" % (s(S_TMP), s(S_TMP), s(S_TMP2)))
        a("buffer_load_dword v0, v7, %s, %s offen %s" % (s(SRD_X, 4), s(S_TMP), cfg.pfflags))
        a("v_mov_b32 v5, 0x7ff00000")
        a("v_cmp_gt_u32 vcc, 26, v%d" % lane)
        a("v_cndmask_b32 v5, v5, v7, vcc")
        a("s_add_u32 %s, %s, 8192" % (s(S_TMP), s(S_TMP)))
        a("buffer_load_dword v0, v5, %s, %s offen %s" % (s(SRD_X, 4), s(S_TMP), cfg.pfflags))
        probe(a, 5, cfg, "su")
    a("v_bfe_u32 v3, v%d, 2, 2" % lane)
    a("v_and_b32 v4, 3, v%d" % lane)
    a("v_lshlrev_b32 v5, 3, v2")
    a("v_add_u32 v5, v5, v3")
    a("v_and_b32 v6, 1, v3")
    a("v_lshrrev_b32 v7, 1, v3")
    a("v_lshlrev_b32 v7, 2, v7")
    a("v_or_b32 v6, v6, v7")
    a("v_and_b32 v7, 1, v2")
    a("v_lshlrev_b32 v7, 3, v7")
    a("v_or_b32 v6, v6, v7")
    a("v_xor_b32 v6, v6, v4")
    a("v_lshlrev_b32 v6, 4, v6")
    a("v_lshlrev_b32 v5, 8, v5")
    a("v_add_u32 v5, v5, v6")
    a("v_and_b32 v6, 1, v4")
    a("v_lshlrev_b32 v6, 3, v6")
    a("v_add_u32 v5, v5, v6")
    a("s_lshl_b32 %s, %s, 13" % (s(S_TMP), s(S_J)))
    a("s_add_u32 %s, %s, %d" % (s(S_TMP), s(S_TMP), WB))
    a("v_add_u32 v5, %s, v5" % s(S_TMP))
    for t in range(4):
        for e in range(2):
            x = (t << 6) ^ (e << 3)
            if x == 0: a("v_mov_b32 v%d, v5" % VWA)
            else: a("v_xor_b32 v%d, %d, v5" % (VWA + t * 2 + e, x))
    a("v_and_b32 v6, 15, v%d" % lane)
    a("v_lshrrev_b32 v7, 1, v6")
    a("v_xor_b32 v7, v7, v2")
    a("v_lshlrev_b32 v7, 4, v7")
    a("v_lshlrev_b32 v6, 7, v6")
    a("v_add_u32 v6, v6, v7")
    a("s_lshl_b32 %s, %s, 11" % (s(S_TMP), s(S_N0)))
    a("s_add_u32 %s, %s, %d" % (s(S_TMP), s(S_TMP), XB))
    a("v_add_u32 v%d, %s, v6" % (VX0, s(S_TMP)))
    a("v_xor_b32 v%d, 64, v%d" % (VX1, VX0))
    if dma:
        emit(dma_x()); emit(dma_wq())
    for i in range(NQ * 32): a("v_mov_b32 v%d, 0" % (V_O + i))
    if dma:
        a("s_waitcnt vmcnt(9)")
    probe(a, 6, cfg, "su")
    a("s_barrier")
    probe(a, 7, cfg, "su")

    def reads(fs, sub):
        ops = []
        for n in range(NQ):
            ops.append(["ds_read_b128 %s, v%d offset:%d" % (v(XF[fs] + 4 * n, 4), VX1 if sub else VX0, n * 2048)])
        for be in range(8):
            ops.append(["ds_read_b64_tr_b16 %s, v%d" % (v(WF[fs] + 4 * be, 2), VWA + be),
                        "ds_read_b64_tr_b16 %s, v%d offset:1024" % (v(WF[fs] + 4 * be + 2, 2), VWA + be)])
        return ops
    def mfmas(fs):
        return ["%s %s, %s, %s, %s" % (MF, v(V_O + n * 32 + be * 4, 4), v(WF[fs] + 4 * be, 4), v(XF[fs] + 4 * n, 4), v(V_O + n * 32 + be * 4, 4))
                for be in range(8) for n in range(NQ)]
    def adv_w():
        return [["s_add_u32 %s, %s, 16384" % (s(S_WR), s(S_WR)),
                 "s_cmp_eq_u32 %s, 49152" % s(S_WR),
                 "s_cselect_b32 %s, %d, %s" % (s(S_WD), -32768 & 0xffffffff, s(S_TMP3 + 0)) if False else "s_cselect_b32 %s, 0, %s" % (s(S_WR), s(S_WR))]]
    a("s_mov_b32 %s, 0" % s(S_WR))
    def advance_w():
        a("s_add_u32 %s, %s, 16384" % (s(S_WR), s(S_WR)))
        a("s_mov_b32 %s, 16384" % s(S_WD))
        a("s_cmp_eq_u32 %s, 49152" % s(S_WR))
        a("s_cselect_b32 %s, 0, %s" % (s(S_WR), s(S_WR)))
        a("s_cselect_b32 %s, %d, %s" % (s(S_WD), (-32768) & 0xffffffff, s(S_WD)))
        for be in range(8):
            a("v_add_u32 v%d, %s, v%d" % (VWA + be, s(S_WD), VWA + be))
    emit(reads(0, 0))
    advance_w()
    a.waitlds(0)
    a("s_mov_b32 %s, 20480" % s(S_XD))
    a("s_mov_b32 %s, 0" % s(S_T))
    lab = a.newlabel("qp")
    a.label(lab)
    P = lambda i: probe(a, i, cfg, "qp", (S_T, 4))
    P(3)
    a("s_barrier")
    P(4)
    def kv_hook(tval):
        if dma: return
        lkv = a.newlabel("kvp")
        a("s_cmp_lg_u32 %s, %d" % (s(S_T), tval))
        a("s_cbranch_scc1 %s" % lkv)
        for part in range(2):
            if part == 0:
                so = (s(S_KVS), s(S_KVL))
            else:
                a("s_xor_b32 %s, %s, 4096" % (s(S_XS), s(S_KVS)))
                a("s_xor_b32 %s, %s, 4096" % (s(S_XL), s(S_KVL)))
                so = (s(S_XS), s(S_XL))
            for g in kv_issue_ops(cfg, so, 6, 7):
                for o in g: a(o)
        kv_advance(a)
        a.label(lkv, keep=True)
    kv_hook(cfg.kv1)
    oth = reads(1, 1)
    if dma:
        d = dma_wq()
        merged = []
        for i in range(max(len(oth), len(d))):
            pass
        k = len(oth) // len(d)
        for i, r in enumerate(oth):
            merged.append(r)
            if i % k == k - 1 and d: merged.append(d.pop(0))
        merged += d
        oth = merged
    interleave(a, mfmas(0), oth)
    P(5)
    advance_w()
    a("v_add_u32 v%d, %s, v%d" % (VX0, s(S_XD), VX0))
    a("v_add_u32 v%d, %s, v%d" % (VX1, s(S_XD), VX1))
    a("s_sub_u32 %s, 0, %s" % (s(S_XD), s(S_XD)))
    a.waitlds(0)
    P(6)
    if dma: a("s_waitcnt vmcnt(4)")
    P(7)
    a("s_barrier")
    P(8)
    kv_hook(cfg.kv0)
    oth = reads(0, 0)
    if dma:
        d = dma_wq() + dma_x()
        merged = []
        for i, r in enumerate(oth):
            merged.append(r)
            if d: merged.append(d.pop(0))
        merged += d
        oth = merged
    interleave(a, mfmas(1), oth)
    P(9)
    advance_w()
    a.waitlds(0)
    if dma: a("s_waitcnt vmcnt(9)")
    P(10)
    a("s_add_u32 %s, %s, 1" % (s(S_T), s(S_T)))
    a("s_cmp_lt_u32 %s, 9" % s(S_T))
    a("s_cbranch_scc1 %s" % lab)
    a.check_backedge(lab)
    a("s_mov_b32 %s, %s" % (s(S_TMP), f32(QSCALE)))
    for n in range(NQ):
        for t in range(4):
            e0 = V_O + n * 32 + (2 * t) * 4; e1 = e0 + 4
            for i in range(4):
                a("v_mul_f32 v%d, %s, v%d" % (e0 + i, s(S_TMP), e0 + i))
                a("v_mul_f32 v%d, %s, v%d" % (e1 + i, s(S_TMP), e1 + i))
            a("v_cvt_pk_bf16_f32 v2, v%d, v%d" % (e0, e0 + 1))
            a("v_cvt_pk_bf16_f32 v3, v%d, v%d" % (e0 + 2, e0 + 3))
            a("v_cvt_pk_bf16_f32 v4, v%d, v%d" % (e1, e1 + 1))
            a("v_cvt_pk_bf16_f32 v5, v%d, v%d" % (e1 + 2, e1 + 3))
            q = Qreg(n, t)
            a("v_cndmask_b32 v%d, v2, v4, %s" % (q + 0, s(S_ODD, 2)))
            a("v_cndmask_b32 v%d, v3, v5, %s" % (q + 1, s(S_ODD, 2)))
            a("v_cndmask_b32 v%d, v4, v2, %s" % (q + 2, s(S_ODD, 2)))
            a("v_cndmask_b32 v%d, v5, v3, %s" % (q + 3, s(S_ODD, 2)))

def attn_tick_compute(a, NQ, cfg, rl):
    A = V_A
    a("v_add_u32 v%d, %s, v%d" % (A + 0, s(S_SLOT), V_KB))
    for t in range(1, 4):
        a("v_xor_b32 v%d, %d, v%d" % (A + t, t << 6, A + 0))
    for k in range(2):
        for t in range(4):
            a("ds_read_b128 %s, v%d offset:%d" % (v(Kreg(k, t), 4), A + t, k * 4096))
    a("v_add_u32 v%d, %s, v%d" % (A + 4, s(S_SLOT), V_VB))
    def vread(db, dst, areg):
        if db: a("v_xor_b32 v%d, %d, v%d" % (areg, db << 5, A + 4))
        src = A + 4 if db == 0 else areg
        a("ds_read_b64_tr_b16 %s, v%d" % (v(dst, 2), src))
        a("ds_read_b64_tr_b16 %s, v%d offset:4096" % (v(dst + 2, 2), src))
    for db in range(4): vread(db, V_VF + 4 * db, A + 5 + (db % 3))
    def qk(n):
        ops = []
        for t in range(4):
            for k in range(2):
                c = v(NM(n), 4) if t == 0 else v(Sreg(n, k), 4)
                ops.append("%s %s, %s, %s, %s" % (MF, v(Sreg(n, k), 4), v(Kreg(k, t), 4), v(Qreg(n, t), 4), c))
        return ops
    def sm_a(n):
        S = V_S + n * 8
        ops = ["v_exp_f32 v%d, v%d" % (S + i, S + i) for i in range(8)]
        ops += ["v_add_f32 v2, v%d, v%d" % (S, S + 1), "v_add_f32 v3, v%d, v%d" % (S + 2, S + 3),
                "v_add_f32 v4, v%d, v%d" % (S + 4, S + 5), "v_add_f32 v5, v%d, v%d" % (S + 6, S + 7),
                "v_add_f32 v2, v2, v3", "v_add_f32 v4, v4, v5", "v_add_f32 v%d, v2, v4" % V_TS,
                "v_cmp_lt_f32 vcc, %s, v%d" % (s(S_THR), V_TS)]
        return ops
    def sm_chk(n):
        a("s_cbranch_vccnz %s" % rl[n][0])
        a.label(rl[n][1], keep=True)
    def first_chk(n):
        a("s_cmp_eq_u32 %s, 0" % s(S_T))
        a("s_cbranch_scc1 %s" % rl[n][2])
        a.label(rl[n][3], keep=True)
    def sm_b(n):
        S = V_S + n * 8
        return ["v_add_f32 v%d, v%d, v%d" % (V_L + n, V_L + n, V_TS)] + \
               ["v_cvt_pk_bf16_f32 v%d, v%d, v%d" % (S + i, S + 2 * i, S + 2 * i + 1) for i in range(4)]
    def pv(n, dbs, vbase):
        return ["%s %s, %s, %s, %s" % (MF, v(Oreg(n, db), 4), v(vbase + 4 * (db % 4), 4), v(V_S + n * 8, 4), v(Oreg(n, db), 4)) for db in dbs]
    def mix(ms, vs):
        per = len(vs) / float(len(ms)); acc = 0.0; j = 0
        for m in ms:
            a(m); acc += per
            while j < len(vs) and j < acc - 1e-9:
                a(vs[j]); j += 1
        while j < len(vs):
            a(vs[j]); j += 1
    def vhi():
        for db in range(4, 8): vread(db, V_KF + 4 * (db - 4), A + 5 + (db % 3))
    LO = range(4); HI = range(4, 8)
    if NQ == 3:
        for o in qk(0): a(o)
        for o in qk(1): a(o)
        first_chk(0)
        mix(qk(2), sm_a(0)); sm_chk(0)
        vhi()
        for o in sm_b(0): a(o)
        first_chk(1)
        mix(pv(0, LO, V_VF), sm_a(1)); sm_chk(1)
        for o in sm_b(1): a(o)
        first_chk(2)
        mix(pv(1, LO, V_VF) + pv(0, HI, V_KF), sm_a(2)); sm_chk(2)
        for o in sm_b(2): a(o)
        for o in pv(1, HI, V_KF) + pv(2, LO, V_VF) + pv(2, HI, V_KF): a(o)
    else:
        for o in qk(0): a(o)
        for o in qk(1): a(o)
        vhi()
        first_chk(0)
        for o in sm_a(0): a(o)
        sm_chk(0)
        for o in sm_b(0): a(o)
        first_chk(1)
        mix(pv(0, LO, V_VF) + pv(0, HI, V_KF), sm_a(1)); sm_chk(1)
        for o in sm_b(1): a(o)
        for o in pv(1, LO, V_VF) + pv(1, HI, V_KF): a(o)

def rare_path(a, n, labels):
    S = V_S + n * 8
    a.label(labels[0])
    a("s_waitcnt lgkmcnt(0)")
    a.nop(10)
    T4 = V_TMP4
    a("v_add_u32 v2, %s, v%d" % (s(S_SLOT), V_KB))
    for k in range(2):
        for t in range(4):
            a("v_xor_b32 v3, %d, v2" % (t << 6))
            a("ds_read_b128 %s, v3 offset:%d" % (v(T4, 4), k * 4096))
            c = v(NM(n), 4) if t == 0 else v(Sreg(n, k), 4)
            a("%s %s, %s, %s, %s" % (MF, v(Sreg(n, k), 4), v(T4, 4), v(Qreg(n, t), 4), c))
            a.nop(4)
    a.nop(8)
    a("v_max3_f32 v2, v%d, v%d, v%d" % (S, S + 1, S + 2))
    a("v_max3_f32 v2, v2, v%d, v%d" % (S + 3, S + 4))
    a("v_max3_f32 v2, v2, v%d, v%d" % (S + 5, S + 6))
    a("v_max_f32 v2, v2, v%d" % (S + 7))
    for x in (16, 32):
        a("v_xor_b32 v3, %d, v%d" % (x, V_LANE))
        a("v_lshlrev_b32 v3, 2, v3")
        a("ds_bpermute_b32 v4, v3, v2")
        a("v_max_f32 v2, v2, v4")
    a("v_max_f32 v2, %s, v2" % s(S_FLOOR))
    a("v_max_f32 v3, 0, v2")
    a("v_sub_f32 v3, 0, v3")
    a("v_exp_f32 v3, v3")
    for i in range(4): a("v_sub_f32 v%d, v%d, v2" % (NM(n) + i, NM(n) + i))
    for i in range(8): a("v_sub_f32 v%d, v%d, v2" % (S + i, S + i))
    for i in range(8): a("v_exp_f32 v%d, v%d" % (S + i, S + i))
    for i in range(32): a("v_mul_f32 v%d, v%d, v3" % (V_O + n * 32 + i, V_O + n * 32 + i))
    a("v_mul_f32 v%d, v%d, v3" % (V_L + n, V_L + n))
    a("v_add_f32 v2, v%d, v%d" % (S, S + 1))
    a("v_add_f32 v3, v%d, v%d" % (S + 2, S + 3))
    a("v_add_f32 v4, v%d, v%d" % (S + 4, S + 5))
    a("v_add_f32 v5, v%d, v%d" % (S + 6, S + 7))
    a("v_add_f32 v2, v2, v3")
    a("v_add_f32 v4, v4, v5")
    a("v_add_f32 v%d, v2, v4" % V_TS)
    a.nop(4)
    a("s_branch %s" % labels[1])

def first_path(a, n, labels):
    S = V_S + n * 8
    a.label(labels[2], keep=True)
    a.nop(10)
    a("v_max3_f32 v2, v%d, v%d, v%d" % (S, S + 1, S + 2))
    a("v_max3_f32 v2, v2, v%d, v%d" % (S + 3, S + 4))
    a("v_max3_f32 v2, v2, v%d, v%d" % (S + 5, S + 6))
    a("v_max_f32 v2, v2, v%d" % (S + 7))
    for x in (16, 32):
        a("v_xor_b32 v3, %d, v%d" % (x, V_LANE))
        a("v_lshlrev_b32 v3, 2, v3")
        a("ds_bpermute_b32 v4, v3, v2")
        a("s_waitcnt lgkmcnt(0)")
        a("v_max_f32 v2, v2, v4")
    for i in range(4): a("v_sub_f32 v%d, 0, v2" % (NM(n) + i))
    for i in range(8): a("v_sub_f32 v%d, v%d, v2" % (S + i, S + i))
    a.nop(2)
    a("s_branch %s" % labels[3])

def attn_wave(a, NQ, cfg):
    lane = V_LANE
    a("v_lshrrev_b32 v2, 4, v%d" % lane)
    a("v_and_b32 v3, 15, v%d" % lane)
    a("v_xor_b32 v4, v2, v3")
    a("v_lshlrev_b32 v4, 4, v4")
    a("v_lshlrev_b32 v3, 8, v3")
    a("v_add_u32 v3, v3, v4")
    a("s_lshl_b32 %s, %s, 14" % (s(S_TMP), s(S_J)))
    a("v_add_u32 v%d, %s, v3" % (V_KB, s(S_TMP)))
    a("v_bfe_u32 v3, v%d, 2, 2" % lane)
    a("v_and_b32 v4, 3, v%d" % lane)
    a("v_lshlrev_b32 v5, 2, v2")
    a("v_add_u32 v5, v5, v3")
    a("v_and_b32 v6, 7, v5")
    a("v_lshlrev_b32 v6, 1, v6")
    a("v_lshrrev_b32 v7, 1, v4")
    a("v_xor_b32 v6, v6, v7")
    a("v_lshlrev_b32 v6, 4, v6")
    a("v_lshlrev_b32 v5, 8, v5")
    a("v_add_u32 v5, v5, v6")
    a("v_and_b32 v6, 1, v4")
    a("v_lshlrev_b32 v6, 3, v6")
    a("v_add_u32 v5, v5, v6")
    a("s_add_u32 %s, %s, 8192" % (s(S_TMP), s(S_TMP)))
    a("v_add_u32 v%d, %s, v5" % (V_VB, s(S_TMP)))
    a("s_mov_b32 %s, %s" % (s(S_THR), f32(cfg.thr)))
    for n in range(NQ):
        for i in range(32): a("v_mov_b32 v%d, 0" % (V_O + n * 32 + i))
        for i in range(4): a("v_mov_b32 v%d, 0" % (NM(n) + i))
        a("v_mov_b32 v%d, 0" % (V_L + n))
    a("s_mov_b32 %s, 0" % s(S_FLOOR))
    a("s_mov_b32 %s, 0" % s(S_T))
    a("s_mov_b32 %s, 0" % s(S_SLOT))
    loop = a.newlabel("att")
    rl = [(a.newlabel("rare"), a.newlabel("rret"), a.newlabel("first"), a.newlabel("fret")) for n in range(NQ)]
    P = lambda i: probe(a, i, cfg, "at", (S_T, 8))
    a.label(loop)
    P(3)
    a("s_barrier")
    trace(a, cfg, 0, S_T)
    P(4)
    attn_tick_compute(a, NQ, cfg, rl)
    trace(a, cfg, 16, S_T)
    P(5)
    for g in kv_issue_ops(cfg, (s(S_KVS), s(S_KVL)), 6, 7):
        for o in g: a(o)
    kv_advance(a)
    lwo = a.newlabel("wopf")
    a("s_cmp_lg_u32 %s, %d" % (s(S_T), cfg.wopf_tick))
    a("s_cbranch_scc1 %s" % lwo)
    a("s_cmp_ge_u32 %s, 5" % s(S_W))
    a("s_cbranch_scc1 %s" % lwo)
    a("v_lshlrev_b32 v7, 7, v%d" % lane)
    a("s_lshl_b32 %s, %s, 3" % (s(S_TMP), s(S_J4)))
    a("s_add_u32 %s, %s, %s" % (s(S_TMP), s(S_TMP), s(S_B)))
    a("s_mul_i32 %s, %s, 36864" % (s(S_TMP), s(S_TMP)))
    a("s_mul_i32 %s, %s, 1179648" % (s(S_TMP2), s(S_XH)))
    a("s_add_u32 %s, %s, %s" % (s(S_TMP), s(S_TMP), s(S_TMP2)))
    a("s_lshl_b32 %s, %s, 13" % (s(S_TMP2), s(S_W)))
    a("s_add_u32 %s, %s, %s" % (s(S_TMP), s(S_TMP), s(S_TMP2)))
    a("buffer_load_dword v0, v7, %s, %s offen %s" % (s(SRD_WO, 4), s(S_TMP), cfg.pfflags))
    a.label(lwo, keep=True)
    trace(a, cfg, 32, S_T)
    P(6)
    a("s_add_u32 %s, %s, %d" % (s(S_SLOT), s(S_SLOT), SLOT))
    a("s_cmp_eq_u32 %s, %d" % (s(S_SLOT), NSLOT * SLOT))
    a("s_cselect_b32 %s, 0, %s" % (s(S_SLOT), s(S_SLOT)))
    a("s_waitcnt vmcnt(12)")
    trace(a, cfg, 48, S_T)
    P(7)
    a("s_add_u32 %s, %s, 1" % (s(S_T), s(S_T)))
    a("s_cmp_lt_u32 %s, 16" % s(S_T))
    a("s_cbranch_scc1 %s" % loop)
    a.check_backedge(loop)
    return rl

def attn_epilogue(a, NQ, cfg):
    lane = V_LANE
    a.nop(8)
    PK = V_Q
    T = V_S
    for x in (16, 32):
        a("v_xor_b32 v3, %d, v%d" % (x, lane))
        a("v_lshlrev_b32 v3, 2, v3")
        for n in range(NQ): a("ds_bpermute_b32 v%d, v3, v%d" % (T + n, V_L + n))
        for n in range(NQ): a("v_add_f32 v%d, v%d, v%d" % (V_L + n, V_L + n, T + n))
    for n in range(NQ): a("v_rcp_f32 v%d, v%d" % (T + 4 + 2 * n, V_L + n))
    trace(a, cfg, 3, kind=2)
    for n in range(NQ):
        L = T + 4 + 2 * n
        for u in range(4):
            o0 = Oreg(n, 2 * u); o1 = o0 + 4
            for i in range(0, 8, 2):
                a("v_pk_mul_f32 %s, %s, %s op_sel_hi:[1,0]" % (v(o0 + i, 2), v(o0 + i, 2), v(L, 2)))
            d = PK + (n * 4 + u) * 4
            a("v_cvt_pk_bf16_f32 v%d, v%d, v%d" % (d + 0, o0, o0 + 1))
            a("v_cvt_pk_bf16_f32 v%d, v%d, v%d" % (d + 1, o0 + 2, o0 + 3))
            a("v_cvt_pk_bf16_f32 v%d, v%d, v%d" % (d + 2, o1, o1 + 1))
            a("v_cvt_pk_bf16_f32 v%d, v%d, v%d" % (d + 3, o1 + 2, o1 + 3))
    a("s_lshl_b32 %s, %s, 3" % (s(S_TMP), s(S_BR)))
    a("s_add_u32 %s, %s, %s" % (s(S_TMP), s(S_TMP), s(S_B)))
    a("s_lshl_b32 %s, %s, 5" % (s(S_TMP), s(S_TMP)))
    a("s_lshl_b32 %s, %s, 1" % (s(S_TMP2), s(S_P)))
    a("s_add_u32 %s, %s, %s" % (s(S_TMP), s(S_TMP), s(S_TMP2)))
    a("s_add_u32 %s, %s, %s" % (s(S_TMP), s(S_TMP), s(S_J)))
    a("s_mul_i32 %s, %s, 40" % (s(S_TMP), s(S_TMP)))
    a("s_add_u32 %s, %s, %s" % (s(S_TMP), s(S_TMP), s(S_N0)))
    a("s_lshl_b32 %s, %s, 10" % (s(S_OOFF), s(S_TMP)))
    if WS_OF: a("s_add_u32 %s, %s, %d" % (s(S_OOFF), s(S_OOFF), WS_OF))

def o_store_ops(NQ, cfg):
    PK = V_Q
    g = []
    for n in range(NQ):
        for u in range(4):
            g.append(["s_add_u32 %s, %s, %d" % (s(S_TMP), s(S_OOFF), (u * 10 + n) * 1024),
                      "buffer_store_dwordx4 %s, v%d, %s, %s offen %s" % (v(PK + (n * 4 + u) * 4, 4), T_VL16, s(SRD_WS, 4), s(S_TMP), cfg.stflags)])
    return g

def flag_reset1(a, cfg):
    l = a.newlabel("frs")
    a("s_lshl_b32 %s, %s, 8" % (s(S_TMP), s(S_GRP)))
    a("s_lshl_b32 %s, %s, 2" % (s(S_TMP2), s(S_J4)))
    a("s_add_u32 %s, %s, %s" % (s(S_TMP), s(S_TMP), s(S_TMP2)))
    a("s_add_u32 %s, %s, %d" % (s(S_FLG), s(S_TMP), WS_FL))
    a("s_lshl_b32 %s, %s, 2" % (s(S_G2), s(S_BR)))
    a("s_add_u32 %s, %s, %s" % (s(S_G2), s(S_G2), s(S_J4)))
    a("s_lshl_b32 %s, %s, 3" % (s(S_G2), s(S_G2)))
    a("s_add_u32 %s, %s, %s" % (s(S_G2), s(S_G2), s(S_B)))
    a("s_cmp_lg_u32 %s, 0" % s(S_W))
    a("s_cbranch_scc1 %s" % l)
    a("v_mov_b32 v2, 0")
    a("s_mov_b64 %s, exec" % s(S_EXEC, 2))
    a("s_mov_b64 exec, 1")
    a("buffer_store_dword v2, v2, %s, %s offen sc0 sc1" % (s(SRD_WS, 4), s(S_FLG)))
    flag2_off(a, S_TMP)
    a("buffer_store_dword v2, v2, %s, %s offen sc0 sc1" % (s(SRD_WS, 4), s(S_TMP)))
    a("s_mov_b64 exec, %s" % s(S_EXEC, 2))
    a.label(l, keep=True)

def flag2_off(a, dst):
    a("s_lshl_b32 %s, %s, 8" % (s(dst), s(S_G2)))
    a("s_lshl_b32 %s, %s, 2" % (s(S_TMP2), s(S_XH)))
    a("s_add_u32 %s, %s, %s" % (s(dst), s(dst), s(S_TMP2)))
    a("s_add_u32 %s, %s, %d" % (s(dst), s(dst), WS_FL + 64 * 256))

def flag_reset2(a, cfg):
    l = a.newlabel("frs2")
    a("s_cmp_lg_u32 %s, 0" % s(S_W))
    a("s_cbranch_scc1 %s" % l)
    a("s_mov_b64 %s, exec" % s(S_EXEC, 2))
    a("s_mov_b64 exec, 1")
    a("s_lshl_b32 %s, %s, 2" % (s(S_TMP), s(S_GRP)))
    a("v_mov_b32 v2, %s" % s(S_TMP))
    a("v_mov_b32 v3, 1")
    a("global_atomic_add v2, v3, %s sc1" % s(S_DBG, 2))
    a("s_lshl_b32 %s, %s, 2" % (s(S_TMP), s(S_G2)))
    a("v_mov_b32 v4, %s" % s(S_TMP))
    a("v_mov_b32 v5, 0x10000")
    a("global_atomic_add v4, v5, %s sc1" % s(S_DBG, 2))
    a("s_mov_b64 exec, %s" % s(S_EXEC, 2))
    a.label(l, keep=True)

def flag_check_reset(a, cfg):
    lp = a.newlabel("fchk"); ld = a.newlabel("fchkd")
    a("s_cmp_lg_u32 %s, 0" % s(S_W))
    a("s_cbranch_scc1 %s" % ld)
    a("s_lshl_b32 %s, %s, 2" % (s(S_TMP), s(S_GRP)))
    a("v_mov_b32 v2, %s" % s(S_TMP))
    a("s_lshl_b32 %s, %s, 2" % (s(S_TMP), s(S_G2)))
    a("v_mov_b32 v4, %s" % s(S_TMP))
    a("s_mov_b32 %s, 0" % s(S_TMP2))
    a.label(lp, keep=True)
    a("global_load_dword v3, v2, %s sc1" % s(S_DBG, 2))
    a("global_load_dword v5, v4, %s sc1" % s(S_DBG, 2))
    a("s_waitcnt vmcnt(0)")
    a("v_and_b32 v3, 0xffff, v3")
    a("v_lshrrev_b32 v5, 16, v5")
    a("v_min_u32 v3, v3, v5")
    a("v_readfirstlane_b32 %s, v3" % s(S_TMP3))
    a("s_add_u32 %s, %s, 1" % (s(S_TMP2), s(S_TMP2)))
    a("s_cmp_ge_u32 %s, 4" % s(S_TMP3))
    a("s_cbranch_scc1 %s" % ld)
    a("s_sleep 8")
    a("s_cmp_lt_u32 %s, 100000" % s(S_TMP2))
    a("s_cbranch_scc1 %s" % lp)
    a.label(ld, keep=True)
    a("s_waitcnt vmcnt(0)")

def signal(a, cfg, val, off=None):
    lsig = a.newlabel("sig")
    a("s_cmp_lg_u32 %s, 0" % s(S_W))
    a("s_cbranch_scc1 %s" % lsig)
    a("v_mov_b32 v2, 0")
    a("v_mov_b32 v3, %d" % val)
    a("s_mov_b64 %s, exec" % s(S_EXEC, 2))
    a("s_mov_b64 exec, 1")
    a("buffer_store_dword v3, v2, %s, %s offen sc0 sc1" % (s(SRD_WS, 4), s(off if off else S_FLG)))
    a("s_mov_b64 exec, %s" % s(S_EXEC, 2))
    a.label(lsig, keep=True)

def poll(a, cfg, target, off=None):
    lp = a.newlabel("poll"); ld = a.newlabel("polld")
    a("s_cmp_lg_u32 %s, 0" % s(S_W))
    a("s_cbranch_scc1 %s" % ld)
    a("s_and_b32 %s, %s, 0xffffff00" % (s(S_TMP), s(off if off else S_FLG)))
    a("v_mov_b32 v2, 0")
    a("s_mov_b32 %s, 0" % s(S_TMP2))
    a.label(lp, keep=True)
    a("buffer_load_dwordx4 v[4:7], v2, %s, %s offen sc0 sc1" % (s(SRD_WS, 4), s(S_TMP)))
    a("s_waitcnt vmcnt(0)")
    a("v_and_b32 v4, v4, v5")
    a("v_and_b32 v6, v6, v7")
    a("v_and_b32 v4, v4, v6")
    a("v_readfirstlane_b32 %s, v4" % s(S_TMP3))
    a("s_add_u32 %s, %s, 1" % (s(S_TMP2), s(S_TMP2)))
    a("s_cmp_eq_u32 %s, 1" % s(S_TMP3))
    a("s_cbranch_scc1 %s" % ld)
    a("s_sleep 2")
    a("s_cmp_lt_u32 %s, 200000" % s(S_TMP2))
    a("s_cbranch_scc1 %s" % lp)
    a.label(ld, keep=True)
    a("s_barrier")

TSLOT = 20480; TWO = 10240
T_VD0 = 20; T_VD1 = 21; T_VX = 22; T_VDO = 23; T_VR = 24; T_VOR = 25; T_VL16 = 26
S_WK = 74; S_OK = 75; S_IS = 76; S_RD = 77; S_XK = 78; S_XSTR = 79; S_XLIM = 60; S_XL = 61; S_WL = 62; S_R2 = 63
SRD_XI = 16
OOB = 0x7fffff00

def emit(a, groups):
    for g in groups:
        for o in g: a(o)

def t_issue(NQ, cfg, with_o):
    g = []
    if NQ == 2:
        g.append(["s_add_u32 m0, %s, %s" % (s(S_IS), s(S_WL)),
                  "s_add_u32 %s, %s, %d" % (s(S_IS), s(S_IS), TSLOT),
                  "buffer_load_dwordx4 v%d, %s, %s offen %s lds" % (T_VD0, s(SRD_WO, 4), s(S_WK), cfg.wflags)])
        g.append(["buffer_load_dwordx4 v%d, %s, %s offen offset:1024 %s lds" % (T_VD1, s(SRD_WO, 4), s(S_WK), cfg.wflags),
                  "s_add_u32 %s, %s, 36864" % (s(S_WK), s(S_WK)),
                  "s_cmp_eq_u32 %s, %d" % (s(S_WK), 32 * 36864),
                  "s_cselect_b32 %s, 0, %s" % (s(S_WK), s(S_WK))])
        g.append(["s_add_u32 %s, %s, %s" % (s(S_TMP), s(S_IS), s(S_XL)),
                  "s_mov_b32 m0, %s" % s(S_TMP),
                  "s_cmp_eq_u32 %s, %d" % (s(S_IS), 8 * TSLOT),
                  "s_cselect_b32 %s, 0, %s" % (s(S_IS), s(S_IS)),
                  "buffer_load_dwordx4 v%d, %s, %s offen %s lds" % (T_VX, s(SRD_XI, 4), s(S_XK), cfg.ldflags),
                  "s_add_u32 %s, %s, %s" % (s(S_XK), s(S_XK), s(S_XSTR)),
                  "s_cmp_eq_u32 %s, %s" % (s(S_XK), s(S_XLIM)),
                  "s_cselect_b32 %s, 0, %s" % (s(S_XK), s(S_XK))])
    else:
        if with_o:
            g.append(["s_add_u32 m0, %s, %s" % (s(S_IS), s(S_WL)),
                      "s_add_u32 %s, %s, %d" % (s(S_IS), s(S_IS), TSLOT),
                      "buffer_load_dwordx4 v%d, %s, %s offen %s lds" % (T_VDO, s(SRD_X, 4), s(S_OK), cfg.ldflags),
                      "s_cmp_eq_u32 %s, %d" % (s(S_IS), 8 * TSLOT),
                      "s_cselect_b32 %s, 0, %s" % (s(S_IS), s(S_IS))])
            g.append(["buffer_load_dwordx4 v%d, %s, %s offen offset:1024 %s lds" % (T_VDO, s(SRD_X, 4), s(S_OK), cfg.ldflags),
                      "s_add_u32 %s, %s, 10240" % (s(S_OK), s(S_OK)),
                      "s_cmp_eq_u32 %s, %d" % (s(S_OK), 32 * 10240),
                      "s_cselect_b32 %s, 0, %s" % (s(S_OK), s(S_OK))])
    return g

def tail_pre(a, NQ, cfg):
    lane = V_LANE
    trace(a, cfg, 0, kind=2)
    flag_check_reset(a, cfg)
    a("s_barrier")
    trace(a, cfg, 1, kind=2)
    probe(a, 4, cfg, "tl")
    a("v_lshlrev_b32 v%d, 4, v%d" % (T_VL16, lane))
    a("s_mul_i32 %s, %s, 1179648" % (s(S_TMP), s(S_XH)))
    a("s_add_u32 %s, %s, %s" % (s(SRD_WO), s(SRD_WO), s(S_TMP)))
    a("s_addc_u32 %s, %s, 0" % (s(SRD_WO + 1), s(SRD_WO + 1)))
    a("s_mov_b32 %s, 1179648" % s(SRD_WO + 2))
    a("s_lshl_b32 %s, %s, 3" % (s(S_TMP), s(S_BR)))
    a("s_add_u32 %s, %s, %s" % (s(S_TMP), s(S_TMP), s(S_B)))
    a("s_lshl_b32 %s, %s, 5" % (s(S_TMP), s(S_TMP)))
    a("s_lshl_b32 %s, %s, 3" % (s(S_TMP2), s(S_XH)))
    a("s_add_u32 %s, %s, %s" % (s(S_TMP), s(S_TMP), s(S_TMP2)))
    a("s_mul_i32 %s, %s, 40960" % (s(S_TMP), s(S_TMP)))
    if WS_OF: a("s_add_u32 %s, %s, %d" % (s(S_TMP), s(S_TMP), WS_OF))
    srd(a, SRD_X, 6, 327680, S_TMP)
    a("s_mul_i32 %s, %s, %d" % (s(S_WK), s(S_J4), 8 * 36864))
    a("s_mov_b32 %s, 0" % s(S_IS))
    if NQ == 2:
        a("s_sub_u32 %s, %s, 2" % (s(S_R2), s(S_W)))
        a("s_mul_i32 %s, %s, 288" % (s(S_TMP3), s(S_J4)))
        for i in range(3):
            if i < 2:
                a("s_lshl_b32 %s, %s, 7" % (s(S_TMP), s(S_R2)))
                if i: a("s_add_u32 %s, %s, 64" % (s(S_TMP), s(S_TMP)))
            else:
                a("s_mov_b32 %s, 512" % s(S_TMP))
            a("v_add_u32 v2, %s, v%d" % (s(S_TMP), lane))
            a("s_mov_b32 %s, 3641" % s(S_TMP2))
            a("v_mul_u32_u24 v3, %s, v2" % s(S_TMP2))
            a("v_lshrrev_b32 v3, 16, v3")
            a("v_mul_u32_u24 v4, 18, v3")
            a("v_sub_u32 v4, v2, v4")
            a("v_mul_u32_u24 v3, 1152, v3")
            a("v_lshlrev_b32 v4, 4, v4")
            a("v_add_u32 v3, v3, v4")
            dst = (T_VD0, T_VD1, T_VX)[i]
            a("v_add_u32 v%d, %s, v3" % (dst, s(S_TMP3)))
            if i == 1: a("v_subrev_u32 v%d, 1024, v%d" % (dst, dst))
        a("s_lshl_b32 %s, %s, 11" % (s(S_WL), s(S_R2)))
        a("s_add_u32 %s, %s, %d" % (s(S_WL), s(S_WL), TWO))
        for i in range(3): a("s_mov_b32 %s, %s" % (s(SRD_XI + i), s(SRD_WO + i)))
        a("s_mov_b32 %s, 0x20000" % s(SRD_XI + 3))
        a("s_cmp_ge_u32 %s, 2" % s(S_R2))
        a("s_cselect_b32 %s, %s, %d" % (s(S_XK), s(S_WK), OOB))
        a("s_cselect_b32 %s, 36864, 0" % s(S_XSTR))
        a("s_mov_b32 %s, %d" % (s(S_XLIM), 32 * 36864))
        a("s_mov_b32 %s, 19456" % s(S_TMP))
        a("s_cmp_ge_u32 %s, 2" % s(S_R2))
        a("s_cselect_b32 %s, %d, %s" % (s(S_XL), TWO + 8192, s(S_TMP)))
        a("s_sub_u32 %s, %s, %d" % (s(S_XL), s(S_XL), TSLOT))
        for ks in range(6): emit(a, t_issue(NQ, cfg, False))
    else:
        a("s_add_u32 %s, %s, 2" % (s(S_R2), s(S_W)))
        a("s_and_b32 %s, %s, 3" % (s(S_R2), s(S_R2)))
        a("s_lshl_b32 %s, %s, 11" % (s(S_WL), s(S_R2)))
        a("v_add_u32 v%d, %s, v%d" % (T_VDO, s(S_WL), T_VL16))
    trace(a, cfg, 2, kind=2)
    attn_epilogue(a, NQ, cfg)
    trace(a, cfg, 4, kind=2)
    PK = V_Q
    a("s_mul_i32 %s, %s, %d" % (s(S_TMP), s(S_J), 4 * TSLOT))
    a("s_lshl_b32 %s, %s, 10" % (s(S_TMP2), s(S_N0)))
    a("s_add_u32 %s, %s, %s" % (s(S_TMP), s(S_TMP), s(S_TMP2)))
    a("v_add_u32 v2, %s, v%d" % (s(S_TMP), T_VL16))
    for n in range(NQ):
        for u in range(4):
            a("ds_write_b128 v2, %s offset:%d" % (v(PK + (n * 4 + u) * 4, 4), u * TSLOT + n * 1024))
    a("v_lshrrev_b32 v2, 4, v%d" % lane)
    a("v_bfe_u32 v3, v%d, 2, 2" % lane)
    a("v_lshlrev_b32 v2, 2, v2")
    a("v_add_u32 v2, v2, v3")
    a("v_mul_u32_u24 v2, 288, v2")
    a("v_and_b32 v3, 3, v%d" % lane)
    a("v_lshlrev_b32 v3, 3, v3")
    a("v_add_u32 v2, v2, v3")
    a("s_mul_i32 %s, %s, 160" % (s(S_TMP), s(S_J)))
    a("s_add_u32 %s, %s, %d" % (s(S_TMP), s(S_TMP), TWO))
    a("v_add_u32 v%d, %s, v2" % (T_VR, s(S_TMP)))
    a("s_lshl_b32 %s, %s, 10" % (s(S_TMP), s(S_N0)))
    a("v_add_u32 v%d, %s, v%d" % (T_VOR, s(S_TMP), T_VL16))
    a("s_add_u32 %s, %s, 1" % (s(S_OK), s(S_J4)))
    a("s_and_b32 %s, %s, 3" % (s(S_OK), s(S_OK)))
    a("s_mul_i32 %s, %s, %d" % (s(S_OK), s(S_OK), 8 * 10240))

def tail_loop(a, NQ, NN, cfg):
    ACC = 160
    OFR = [56, 68]; WFR = [80, 220]
    perA = 3 if NQ == 2 else 0
    perB = 3 if NQ == 2 else 2
    for i in range(NQ * NN * 4): a("v_mov_b32 v%d, 0" % (ACC + i))
    def reads(fs):
        ta, tb = (2, 3) if fs == 0 else (4, 5)
        ops = [["v_add_u32 v%d, %s, v%d" % (ta, s(S_RD), T_VR), "v_add_u32 v%d, %s, v%d" % (tb, s(S_RD), T_VOR),
                "s_add_u32 %s, %s, %d" % (s(S_RD), s(S_RD), TSLOT),
                "s_cmp_eq_u32 %s, %d" % (s(S_RD), 8 * TSLOT),
                "s_cselect_b32 %s, 0, %s" % (s(S_RD), s(S_RD))]]
        for n in range(NQ):
            ops.append(["ds_read_b128 %s, v%d offset:%d" % (v(OFR[fs] + 4 * n, 4), tb, n * 1024)])
        for j in range(NN):
            ops.append(["ds_read_b64_tr_b16 %s, v%d offset:%d" % (v(WFR[fs] + 4 * j, 2), ta, j * 32),
                        "ds_read_b64_tr_b16 %s, v%d offset:%d" % (v(WFR[fs] + 4 * j + 2, 2), ta, j * 32 + 16 * 288)])
        return ops
    def mfmas(fs):
        return ["%s %s, %s, %s, %s" % (MF, v(ACC + (n * NN + j) * 4, 4), v(WFR[fs] + 4 * j, 4), v(OFR[fs] + 4 * n, 4), v(ACC + (n * NN + j) * 4, 4))
                for j in range(NN) for n in range(NQ)]
    def half(fs, extra):
        ms = mfmas(fs); rd = reads(1 - fs)
        n = len(ms)
        sched = {}
        for i, g in enumerate(rd): sched.setdefault(min(i, n - 1), []).append(g)
        for i, g in enumerate(extra):
            pos = int((i + 0.6) * n / max(len(extra), 1))
            sched.setdefault(min(pos, n - 1), []).append(g)
        for i, m in enumerate(ms):
            a(m)
            for g in sched.get(i, []):
                for o in g: a(o)
    trace(a, cfg, 5, kind=2)
    a.waitlds(0)
    if NQ == 2: a("s_waitcnt vmcnt(%d)" % (3 * perA))
    trace(a, cfg, 6, kind=2)
    a("s_barrier")
    trace(a, cfg, 7, kind=2)
    a("s_mov_b32 %s, 0" % s(S_RD))
    emit(a, reads(0))
    a.waitlds(0)
    stores = o_store_ops(NQ, cfg)
    nst = len(stores)
    q = []
    if NQ == 2: q = ["d%d" % k for k in range(6) for _ in range(3)]
    def need_wait(tags):
        idx = max([i for i, x in enumerate(q) if x in tags] or [-1])
        return len(q) - 1 - idx
    for it in range(4):
        ks = 2 * it
        a("s_barrier")
        trace(a, cfg, 8 + ks, kind=2)
        if it == 3:
            signal(a, cfg, 1)
        for fs in range(2):
            ex = []
            iss = t_issue(NQ, cfg, False)
            ex += iss
            q_add = ["d%d" % (ks + 6 + fs)] * (3 if NQ == 2 else 0)
            st = []
            if it < 2:
                per = nst // 4
                st = stores[(it * 2 + fs) * per:(it * 2 + fs + 1) * per]
            mix = []
            for i in range(max(len(ex), len(st))):
                if i < len(st): mix.append(st[i]); q.append("st")
                if i < len(ex):
                    mix.append(ex[i]); q.append("d%d" % (ks + 6 + fs))
            half(fs, mix)
        a.waitlds(0)
        tags = {"d%d" % (ks + 3), "d%d" % (ks + 4)}
        if it == 2: tags.add("st")
        nw = need_wait(tags)
        if any(x in tags for x in q): a("s_waitcnt vmcnt(%d)" % min(nw, 63))
    trace(a, cfg, 16, kind=2)
    probe(a, 7, cfg, "tl")
    if cfg.opf:
        a("v_lshrrev_b32 v4, 3, v%d" % V_LANE)
        a("v_and_b32 v5, 3, v4")
        a("v_mul_u32_u24 v5, 10240, v5")
        a("v_lshrrev_b32 v4, 2, v4")
        a("v_lshlrev_b32 v4, 10, v4")
        a("v_add_u32 v5, v5, v4")
        a("v_and_b32 v4, 7, v%d" % V_LANE)
        a("v_lshlrev_b32 v4, 7, v4")
        a("v_add_u32 v5, v5, v4")
        a("buffer_load_dword v0, v5, %s, %s offen" % (s(SRD_WS, 4), s(S_OOFF)))
        if NQ == 3:
            a("v_mov_b32 v4, 0x7ff00000")
            a("v_cmp_gt_u32 vcc, 32, v%d" % V_LANE)
            a("v_cndmask_b32 v5, v4, v5, vcc")
            a("s_add_u32 %s, %s, 2048" % (s(S_TMP), s(S_OOFF)))
            a("buffer_load_dword v0, v5, %s, %s offen" % (s(SRD_WS, 4), s(S_TMP)))
    poll(a, cfg, 4)
    trace(a, cfg, 17, kind=2)
    probe(a, 8, cfg, "tl")
    S_SAVE = 66
    a("s_mov_b32 %s, %s" % (s(S_SAVE), s(S_IS)))
    if NQ == 3:
        a("s_mov_b32 %s, 0" % s(S_IS))
        for k in range(6): emit(a, t_issue(NQ, cfg, True))
    else:
        lsk = a.newlabel("nob")
        a("s_cmp_ge_u32 %s, 2" % s(S_R2))
        a("s_cbranch_scc1 %s" % lsk)
        for i in range(3): a("s_mov_b32 %s, %s" % (s(SRD_XI + i), s(SRD_X + i)))
        a("s_add_u32 %s, %s, 8" % (s(S_TMP), s(S_R2)))
        a("s_lshl_b32 %s, %s, 10" % (s(S_TMP), s(S_TMP)))
        a("v_add_u32 v%d, %s, v%d" % (T_VX, s(S_TMP), T_VL16))
        a("s_mov_b32 %s, %s" % (s(S_XK), s(S_OK)))
        a("s_mov_b32 %s, 10240" % s(S_XSTR))
        a("s_mov_b32 %s, %d" % (s(S_XLIM), 32 * 10240))
        a("s_sub_u32 %s, %s, %d" % (s(S_XL), s(S_TMP), TSLOT))
        for k in range(6):
            a("s_add_u32 m0, %s, %d" % (s(S_TMP), k * TSLOT))
            a("s_nop 0")
            a("buffer_load_dwordx4 v%d, %s, %s offen %s lds" % (T_VX, s(SRD_XI, 4), s(S_XK), cfg.ldflags))
            a("s_add_u32 %s, %s, %s" % (s(S_XK), s(S_XK), s(S_XSTR)))
            a("s_cmp_eq_u32 %s, %s" % (s(S_XK), s(S_XLIM)))
            a("s_cselect_b32 %s, 0, %s" % (s(S_XK), s(S_XK)))
        a.label(lsk)
    a("s_waitcnt vmcnt(0)")
    a("s_barrier")
    trace(a, cfg, 18, kind=2)
    probe(a, 9, cfg, "tl")
    a("s_mov_b32 %s, 0" % s(S_RD))
    emit(a, reads(0))
    a.waitlds(0)
    a("s_mov_b32 %s, 8" % s(S_T))
    lab = a.newlabel("opB"); lno = a.newlabel("opBn"); lend = a.newlabel("opBe")
    a.label(lab)
    a("s_barrier")
    trace(a, cfg, 12, S_T, kind=2)
    a("s_cmp_ge_u32 %s, 26" % s(S_T))
    a("s_cbranch_scc1 %s" % lno)
    for fs in range(2): half(fs, t_issue(NQ, cfg, True))
    a.waitlds(0)
    a("s_waitcnt vmcnt(%d)" % (3 * perB))
    a("s_add_u32 %s, %s, 2" % (s(S_T), s(S_T)))
    a("s_branch %s" % lab)
    a.label(lno)
    for fs in range(2): half(fs, [])
    a.waitlds(0)
    a("s_waitcnt vmcnt(0)")
    a("s_add_u32 %s, %s, 2" % (s(S_T), s(S_T)))
    a("s_cmp_lt_u32 %s, 32" % s(S_T))
    a("s_cbranch_scc1 %s" % lab)
    a.check_backedge(lab)
    probe(a, 10, cfg, "tl")
    trace(a, cfg, 44, kind=2)
    a.nop(8)
    if not cfg.fuse2:
        a("s_lshl_b32 %s, %s, 3" % (s(S_TMP), s(S_BR)))
        a("s_add_u32 %s, %s, %s" % (s(S_TMP), s(S_TMP), s(S_B)))
        a("s_lshl_b32 %s, %s, 2" % (s(S_TMP), s(S_TMP)))
        a("s_add_u32 %s, %s, %s" % (s(S_TMP), s(S_TMP), s(S_XH)))
        a("s_lshl_b32 %s, %s, 2" % (s(S_TMP), s(S_TMP)))
        a("s_add_u32 %s, %s, %s" % (s(S_TMP), s(S_TMP), s(S_J4)))
        a("s_mul_i32 %s, %s, 10" % (s(S_TMP), s(S_TMP)))
        a("s_add_u32 %s, %s, %s" % (s(S_TMP), s(S_TMP), s(S_N0)))
        a("s_mul_i32 %s, %s, 9216" % (s(S_TMP), s(S_TMP)))
        a("s_add_u32 %s, %s, %d" % (s(S_TMP), s(S_TMP), WS_PT + (5 * 1024 if NN == 4 else 0)))
        for n in range(NQ):
            for j in range(NN):
                a("s_add_u32 %s, %s, %d" % (s(S_TMP2), s(S_TMP), (n * 9 + j) * 1024))
                a("buffer_store_dwordx4 %s, v%d, %s, %s offen %s" % (v(ACC + (n * NN + j) * 4, 4), T_VL16, s(SRD_WS, 4), s(S_TMP2), cfg.ptflags))
        return
    nb = NQ * NN; nd = nb * 2; nch = (nd + 3) // 4
    PKB = 56
    S_QR = 66; S_P2 = 67; S_F2 = 78
    a("s_mul_i32 %s, %s, 3" % (s(S_QR), s(S_N0)))
    a("s_lshr_b32 %s, %s, 3" % (s(S_QR), s(S_QR)))
    flag2_off(a, S_F2)
    a("s_lshl_b32 %s, %s, 4" % (s(S_P2), s(S_G2)))
    a("s_add_u32 %s, %s, %s" % (s(S_P2), s(S_P2), s(S_QR)))
    a("s_lshl_b32 %s, %s, 1" % (s(S_P2), s(S_P2)))
    a("s_add_u32 %s, %s, %s" % (s(S_P2), s(S_P2), s(S_J)))
    a("s_lshl_b32 %s, %s, 13" % (s(S_P2), s(S_P2)))
    a("s_add_u32 %s, %s, %d" % (s(S_P2), s(S_P2), WS_P2))
    lkeep = a.newlabel("keep"); ljoin = a.newlabel("s2j"); lend2 = a.newlabel("s2e")
    a("s_cmp_eq_u32 %s, %s" % (s(S_QR), s(S_XH)))
    a("s_cbranch_scc1 %s" % lkeep)
    for b in range(nb):
        a("v_cvt_pk_bf16_f32 v%d, v%d, v%d" % (PKB + 2 * b, ACC + 4 * b, ACC + 4 * b + 1))
        a("v_cvt_pk_bf16_f32 v%d, v%d, v%d" % (PKB + 2 * b + 1, ACC + 4 * b + 2, ACC + 4 * b + 3))
    a("s_lshl_b32 %s, %s, 16" % (s(S_TMP), s(S_XH)))
    a("s_add_u32 %s, %s, %s" % (s(S_TMP), s(S_TMP), s(S_P2)))
    for c in range(nch):
        a("s_add_u32 %s, %s, %d" % (s(S_TMP2), s(S_TMP), c * 1024))
        a("buffer_store_dwordx4 %s, v%d, %s, %s offen sc0 sc1" % (v(PKB + 4 * c, 4), T_VL16, s(SRD_WS, 4), s(S_TMP2)))
    a.label(lkeep)
    a("s_waitcnt vmcnt(0)")
    a("s_barrier")
    signal(a, cfg, 1, off=S_F2)
    trace(a, cfg, 46, kind=2)
    poll(a, cfg, 4, off=S_F2)
    trace(a, cfg, 47, kind=2)
    a("s_cmp_lg_u32 %s, %s" % (s(S_QR), s(S_XH)))
    a("s_cbranch_scc1 %s" % lend2)
    LD = [56, 88, 120]
    for k in range(3):
        a("s_add_u32 %s, %s, %d" % (s(S_TMP), s(S_XH), k + 1))
        a("s_and_b32 %s, %s, 3" % (s(S_TMP), s(S_TMP)))
        a("s_lshl_b32 %s, %s, 16" % (s(S_TMP), s(S_TMP)))
        a("s_add_u32 %s, %s, %s" % (s(S_TMP), s(S_TMP), s(S_P2)))
        for c in range(nch):
            a("s_add_u32 %s, %s, %d" % (s(S_TMP2), s(S_TMP), c * 1024))
            a("buffer_load_dwordx4 %s, v%d, %s, %s offen sc0 sc1" % (v(LD[k] + 4 * c, 4), T_VL16, s(SRD_WS, 4), s(S_TMP2)))
    a("s_load_dwordx2 s[80:81], s[0:1], 80")
    a("v_and_b32 v2, 15, v%d" % V_LANE)
    a("v_mul_u32_u24 v2, 2304, v2")
    a("v_lshrrev_b32 v3, 4, v%d" % V_LANE)
    a("v_lshlrev_b32 v3, 3, v3")
    a("v_add_u32 v2, v2, v3")
    a("s_mul_i32 %s, %s, 160" % (s(S_TMP), s(S_B)))
    a("s_lshl_b32 %s, %s, 4" % (s(S_TMP2), s(S_N0)))
    a("s_add_u32 %s, %s, %s" % (s(S_TMP), s(S_TMP), s(S_TMP2)))
    a("s_mul_i32 %s, %s, 2304" % (s(S_TMP), s(S_TMP)))
    a("s_mul_i32 %s, %s, 1152" % (s(S_TMP2), s(S_BR)))
    a("s_add_u32 %s, %s, %s" % (s(S_TMP), s(S_TMP), s(S_TMP2)))
    a("s_mul_i32 %s, %s, 288" % (s(S_TMP2), s(S_J4)))
    a("s_add_u32 %s, %s, %s" % (s(S_TMP), s(S_TMP), s(S_TMP2)))
    if NN == 4: a("s_add_u32 %s, %s, 160" % (s(S_TMP), s(S_TMP)))
    a("s_waitcnt lgkmcnt(0)")
    srd(a, SRD_K, 80, 8 * 160 * 1152 * 2)
    for k in range(3):
        a("s_waitcnt vmcnt(%d)" % ((2 - k) * nch))
        for b in range(nb):
            for h in range(2):
                src = LD[k] + 2 * b + h
                a("v_lshlrev_b32 v4, 16, v%d" % src)
                a("v_and_b32 v5, 0xffff0000, v%d" % src)
                a("v_add_f32 v%d, v%d, v4" % (ACC + 4 * b + 2 * h, ACC + 4 * b + 2 * h))
                a("v_add_f32 v%d, v%d, v5" % (ACC + 4 * b + 2 * h + 1, ACC + 4 * b + 2 * h + 1))
    for n in range(NQ):
        for j in range(NN):
            b = n * NN + j
            a("v_cvt_pk_bf16_f32 v%d, v%d, v%d" % (PKB + 2 * b, ACC + 4 * b, ACC + 4 * b + 1))
            a("v_cvt_pk_bf16_f32 v%d, v%d, v%d" % (PKB + 2 * b + 1, ACC + 4 * b + 2, ACC + 4 * b + 3))
            a("s_add_u32 %s, %s, %d" % (s(S_TMP2), s(S_TMP), n * 16 * 2304 + j * 32))
            a("buffer_store_dwordx2 %s, v2, %s, %s offen" % (v(PKB + 2 * b, 2), s(SRD_K, 4), s(S_TMP2)))
    a.label(lend2)

def write_stamps(a, cfg, n):
    if cfg.trace:
        a("s_lshl_b32 %s, s2, 3" % s(S_TMP))
        a("s_add_u32 %s, %s, %s" % (s(S_TMP), s(S_TMP), s(S_W)))
        a("s_lshl_b32 %s, %s, 8" % (s(S_TMP), s(S_TMP)))
        a("s_add_u32 %s, %s, %d" % (s(S_TMP), s(S_TMP), WS_ST + (2 << 20)))
        a("v_lshlrev_b32 v2, 2, v%d" % V_LANE)
        a("buffer_store_dword v%d, v2, %s, %s offen" % (V_TR, s(SRD_WS, 4), s(S_TMP)))
    if not cfg.stamps: return
    a("s_waitcnt lgkmcnt(0)")
    lab = a.newlabel("st")
    a("v_cmp_eq_u32 vcc, 0, v%d" % V_LANE)
    a("s_and_saveexec_b64 %s, vcc" % s(S_EXEC, 2))
    a("s_cbranch_execz %s" % lab)
    a("s_lshl_b32 %s, s2, 3" % s(S_TMP))
    a("s_add_u32 %s, %s, %s" % (s(S_TMP), s(S_TMP), s(S_W)))
    a("s_lshl_b32 %s, %s, 7" % (s(S_TMP), s(S_TMP)))
    a("s_add_u32 %s, %s, %d" % (s(S_TMP), s(S_TMP), WS_ST))
    a("v_mov_b32 v2, 0")
    for i in range(n):
        a("v_mov_b32 v4, %s" % s(STAMP_REGS[i]))
        a("v_mov_b32 v5, %s" % s(STAMP_REGS[i] + 1))
        a("buffer_store_dwordx2 v[4:5], v2, %s, %s offen offset:%d" % (s(SRD_WS, 4), s(S_TMP), 8 * i))
        a("s_nop 1")
    a.label(lab)

def kernel1(cfg):
    a = Asm()
    end = "L_k1_end"
    a("s_cmp_ge_u32 s2, 256")
    a("s_cbranch_scc1 %s" % end)
    stamp(a, 0, cfg)
    probe(a, 3, cfg, "su")
    probe(a, 3, cfg, "ck")
    common_ids(a)
    a("s_mul_i32 s5, %s, 40" % s(S_BR))
    a("s_add_u32 s6, s0, s5")
    a("s_addc_u32 s7, s1, 0")
    a("s_load_dwordx4 s[80:83], s[6:7], 0")
    a("s_load_dwordx4 s[84:87], s[6:7], 16")
    a("s_load_dwordx2 s[64:65], s[6:7], 32")
    a("s_load_dwordx4 s[4:7], s[0:1], 88")
    a("v_lshrrev_b32 v2, 6, v0")
    a("v_and_b32 v%d, 63, v0" % V_LANE)
    a("v_readfirstlane_b32 %s, v2" % s(S_W))
    a("s_mov_b32 %s, 0xffff0000" % s(S_ODD))
    a("s_mov_b32 %s, 0xffff0000" % s(S_ODD + 1))
    a("s_and_b32 %s, %s, 3" % (s(S_IDX), s(S_W)))
    a("s_lshr_b32 %s, %s, 2" % (s(S_J), s(S_W)))
    a("s_mov_b32 %s, 0x30868630" % s(S_TMP))
    a("s_lshl_b32 %s, %s, 2" % (s(S_TMP2), s(S_W)))
    a("s_lshr_b32 %s, %s, %s" % (s(S_TMP), s(S_TMP), s(S_TMP2)))
    a("s_and_b32 %s, %s, 15" % (s(S_N0), s(S_TMP)))
    a("s_and_b32 %s, s2, 7" % s(S_GRP))
    a("s_lshl_b32 %s, %s, 3" % (s(S_GRP), s(S_GRP)))
    a("s_add_u32 %s, %s, %s" % (s(S_GRP), s(S_GRP), s(S_B)))
    a("s_lshl_b32 %s, %s, 11" % (s(S_KVS), s(S_IDX)))
    a("s_lshl_b32 %s, %s, 14" % (s(S_KVL), s(S_J)))
    a("s_add_u32 %s, %s, %s" % (s(S_KVL), s(S_KVL), s(S_KVS)))
    kv_voff_setup(a)
    a("s_mul_i32 %s, %s, 184320" % (s(S_TMP), s(S_B)))
    a("s_lshl_b32 %s, %s, 5" % (s(S_TMP2), s(S_B)))
    a("s_lshl_b32 %s, %s, 1" % (s(S_TMP3), s(S_P)))
    a("s_add_u32 %s, %s, %s" % (s(S_TMP2), s(S_TMP2), s(S_TMP3)))
    a("s_add_u32 %s, %s, %s" % (s(S_TMP2), s(S_TMP2), s(S_J)))
    a("s_lshl_b32 %s, %s, 17" % (s(S_TMP2), s(S_TMP2)))
    a("s_waitcnt lgkmcnt(0)")
    probe(a, 4, cfg, "su")
    srd(a, SRD_X, 80, 184320, S_TMP)
    srd(a, SRD_K, 82, 131072, S_TMP2)
    srd(a, SRD_V, 84, 131072, S_TMP2)
    srd(a, SRD_WQ, 86, 4718592)
    srd(a, SRD_WO, 64, 4718592)
    srd(a, SRD_WS, 6, 268435456)
    a("s_mov_b32 %s, 0" % s(S_IT))
    a("s_mov_b32 %s, 0" % s(S_ISLOT))
    flag_reset1(a, cfg)
    a("s_add_u32 %s, %s, 2" % (s(S_TMP), s(S_W)))
    a("s_and_b32 %s, %s, 7" % (s(S_TMP), s(S_TMP)))
    a("s_cmp_lt_u32 %s, 4" % s(S_TMP))
    a("s_cbranch_scc0 L_nq2")
    rares = []
    for NQ in (3, 2):
        if NQ == 2: a.label("L_nq2")
        qproj(a, NQ, cfg)
        stamp(a, 1, cfg)
        probe(a, 5, cfg, "ck")
        a("s_waitcnt vmcnt(0)")
        a("s_barrier")
        flag_reset2(a, cfg)
        a("s_mov_b32 %s, %d" % (s(S_IT), 2 * 8192))
        a("s_mov_b32 %s, %d" % (s(S_ISLOT), 2 * SLOT))
        for t in range(2):
            for g in kv_issue_ops(cfg, (s(S_KVS), s(S_KVL)), 6, 7):
                for o in g: a(o)
            kv_advance(a)
        rl = attn_wave(a, NQ, cfg)
        probe(a, 3, cfg, "tl")
        tail_pre(a, NQ, cfg)
        l4 = a.newlabel("nn4")
        a("s_cmp_eq_u32 %s, 1" % s(S_J))
        a("s_cbranch_scc1 %s" % l4)
        tail_loop(a, NQ, 5, cfg)
        a("s_branch L_k1_fin")
        a.label(l4)
        tail_loop(a, NQ, 4, cfg)
        a("s_branch L_k1_fin")
        for n in range(NQ):
            rare_path(a, n, rl[n])
            first_path(a, n, rl[n])
    a.label("L_k1_fin")
    trace(a, cfg, 45, kind=2)
    if cfg.fuse_o: stamp(a, 2, cfg)
    probe(a, 4, cfg, "ck")
    write_stamps(a, cfg, cfg.nst)
    a.label(end)
    a("s_endpgm")
    return a

def kernel3(cfg):
    a = Asm()
    end = "L_k3_end"
    a("s_cmp_ge_u32 s2, 1440")
    a("s_cbranch_scc1 %s" % end)
    a("s_load_dwordx2 s[80:81], s[0:1], 80")
    a("s_load_dwordx2 s[88:89], s[0:1], 96")
    a("v_lshrrev_b32 v2, 6, v0")
    a("v_and_b32 v%d, 63, v0" % V_LANE)
    a("v_readfirstlane_b32 %s, v2" % s(S_W))
    a("s_lshl_b32 s3, s2, 2")
    a("s_add_u32 s3, s3, %s" % s(S_W))
    a("s_mul_hi_u32 s4, s3, %d" % ((1 << 32) // 90 + 1))
    a("s_mul_i32 s5, s4, 90")
    a("s_sub_u32 s5, s3, s5")
    a("s_mul_hi_u32 s6, s5, %d" % ((1 << 32) // 9 + 1))
    a("s_mul_i32 s7, s6, 9")
    a("s_sub_u32 s7, s5, s7")
    a("s_and_b32 s8, s4, 3")
    a("s_lshr_b32 s9, s4, 2")
    a("s_lshl_b32 s10, s9, 4")
    a("s_add_u32 s10, s10, s8")
    a("s_mul_i32 s10, s10, 90")
    a("s_add_u32 s10, s10, s5")
    a("s_lshl_b32 s10, s10, 10")
    a("s_add_u32 s10, s10, %d" % WS_PT)
    a("s_waitcnt lgkmcnt(0)")
    srd(a, SRD_WS, 88, 268435456)
    srd(a, SRD_WO, 80, 8 * 160 * 1152 * 2)
    a("v_lshlrev_b32 v2, 4, v%d" % V_LANE)
    for xh in range(4):
        a("s_add_u32 s11, s10, %d" % (xh * 4 * 90 * 1024))
        a("buffer_load_dwordx4 %s, v2, %s, s11 offen" % (v(4 + 4 * xh, 4), s(SRD_WS, 4)))
    a("s_and_b32 s12, s9, 7")
    a("s_lshr_b32 s13, s9, 3")
    a("s_mul_i32 s12, s12, 160")
    a("s_lshl_b32 s14, s6, 4")
    a("s_add_u32 s12, s12, s14")
    a("s_mul_i32 s12, s12, 2304")
    a("s_mul_i32 s13, s13, 1152")
    a("s_add_u32 s12, s12, s13")
    a("s_mul_i32 s13, s8, 288")
    a("s_add_u32 s12, s12, s13")
    a("s_lshl_b32 s13, s7, 5")
    a("s_add_u32 s12, s12, s13")
    a("v_and_b32 v3, 15, v%d" % V_LANE)
    a("v_mul_u32_u24 v3, 2304, v3")
    a("v_lshrrev_b32 v20, 4, v%d" % V_LANE)
    a("v_lshlrev_b32 v20, 3, v20")
    a("v_add_u32 v3, v3, v20")
    a("s_waitcnt vmcnt(0)")
    for i in range(4):
        a("v_add_f32 v%d, v%d, v%d" % (4 + i, 4 + i, 8 + i))
        a("v_add_f32 v%d, v%d, v%d" % (12 + i, 12 + i, 16 + i))
    for i in range(4):
        a("v_add_f32 v%d, v%d, v%d" % (4 + i, 4 + i, 12 + i))
    a("v_cvt_pk_bf16_f32 v4, v4, v5")
    a("v_cvt_pk_bf16_f32 v5, v6, v7")
    a("buffer_store_dwordx2 v[4:5], v3, %s, s12 offen" % s(SRD_WO, 4))
    a.label(end)
    a("s_endpgm")
    return a

def kd(name, vgpr=256, sgpr=102):
    return """.amdhsa_kernel %s
  .amdhsa_next_free_vgpr %d
  .amdhsa_next_free_sgpr %d
  .amdhsa_accum_offset %d
  .amdhsa_group_segment_fixed_size 0
  .amdhsa_kernarg_size 104
  .amdhsa_user_sgpr_count 2
  .amdhsa_user_sgpr_kernarg_segment_ptr 1
  .amdhsa_system_sgpr_workgroup_id_x 1
.end_amdhsa_kernel
""" % (name, vgpr, sgpr, (vgpr + 3) // 4 * 4)

KNAME = "concat_heads__mha_block_cached__gqa_block_cached__near_ridge_kernel"
def assemble(kernels, fn):
    t = HDR
    if len(kernels) == 1:
        (name, a, g, b, lds, vg) = kernels[0]
        kernels = [(KNAME, a, g, b, lds, vg)]
        t += "; @launch grid=(%d,1,1) block=(%d,1,1) lds=%d\n" % (g, b, lds)
    else:
      for (name, a, g, b, lds, vg) in kernels:
        t += "; @launch kernel=%s grid=(%d,1,1) block=(%d,1,1) lds=%d\n" % (name, g, b, lds)
    t += '.amdgcn_target "amdgcn-amd-amdhsa--gfx950"\n.text\n'
    for (name, a, g, b, lds, vg) in kernels:
        t += ".globl %s\n.p2align 8\n.type %s,@function\n%s:\n" % (name, name, name)
        t += a.text()
    t += '.section .rodata,"a"\n'
    for (name, a, g, b, lds, vg) in kernels:
        t += ".p2align 6\n" + kd(name, vg)
    open(fn, "w").write(t)

if __name__ == "__main__":
    cfg = Cfg()
    fn = sys.argv[1]
    for kv in sys.argv[2:]:
        k, val = kv.split("=", 1)
        cur = getattr(cfg, k)
        if isinstance(cur, bool): val = val in ("1", "True", "true")
        elif isinstance(cur, float): val = float(val)
        elif isinstance(cur, int): val = int(val)
        setattr(cfg, k, val)
    k1 = kernel1(cfg); k3 = kernel3(cfg)
    ks = [("attn_kernel", k1, 256, 512, LDS_TOTAL, 256)]
    if not cfg.fuse2: ks.append(("reduce_kernel", k3, 1440, 256, 0, 32))
    assemble(ks, fn)
    print("nops inserted:", k1.nnop, k3.nnop, "lines", len(k1.out))
```
